```python
import torch

def _softmax(x, axis=-1):
    return torch.softmax(x, dim=axis)
def _gelu(x):
    return torch.nn.functional.gelu(x, approximate="tanh")
def _silu(x):
    return torch.nn.functional.silu(x)
def _sigmoid(x):
    return torch.sigmoid(x)
def _layernorm(x, axis=-1, eps=1e-5):
    m = x.mean(dim=axis, keepdim=True)
    v = x.var(dim=axis, keepdim=True, unbiased=False)
    return (x - m) / torch.sqrt(v + eps)
def _scatter_add(tgt, idx, src, axis=0):
    return tgt.clone().index_add_(axis, idx, src)
def _segment_sum(src, seg, n):
    out = torch.zeros((n,) + src.shape[1:], dtype=src.dtype)
    return out.index_add_(0, seg, src)
def _pad(x, pw):
    flat = tuple(v for pair in reversed(pw) for v in pair)
    return torch.nn.functional.pad(x, flat)

kernel_name = 'standalone__kv_cache_quant_int4_int2_kv_with_per_channel_or_per_token_scales__prompt'

def setup_inputs():

    _w = (lambda a: (lambda t: t.to(torch.bfloat16) if t.is_floating_point() else t)(torch.as_tensor(a)))
    B = 1
    Sq = 2048
    Skv = 2048
    Hq = 32
    Hkv = 4
    Dh = 128
    bits = 3
    G = -1
    if G <= 0 or G >= Skv:
        G = max(1, Skv // 2)
    Skv = (Skv // G) * G
    ngk = Skv // G
    qmax = (1 << bits) - 1
    return {
        "q": _w((lambda *s: torch.randn(*s, dtype=torch.bfloat16) * 1.6)(B, Hq, Sq, Dh)),
        "qk": _w(torch.randint(0, qmax + 1, (B, Hkv, Skv, Dh)).to(torch.int32)),
        "qv": _w(torch.randint(0, qmax + 1, (B, Hkv, Skv, Dh)).to(torch.int32)),
        "k_scales": _w(torch.abs((lambda *s: torch.randn(*s, dtype=torch.bfloat16) * 1.6)(B, Hkv, ngk, Dh)) * 0.05 + 0.02),
        "k_zeros": _w((lambda *s: torch.randn(*s, dtype=torch.bfloat16) * 1.6)(B, Hkv, ngk, Dh) + float(qmax) / 2.0),
        "v_scales": _w(torch.abs((lambda *s: torch.randn(*s, dtype=torch.bfloat16) * 0.05)(B, Hkv, Skv, 1)) * 0.05 + 0.02),
        "v_zeros": _w((lambda *s: torch.randn(*s, dtype=torch.bfloat16) * 0.05)(B, Hkv, Skv, 1) + float(qmax) / 2.0),
    }

def reference(q, qk, qv, k_scales, k_zeros, v_scales, v_zeros):
    B, Hq, Sq, Dh = q.shape
    Hkv, Skv = qk.shape[1], qk.shape[2]
    ngk = k_scales.shape[2]
    G = Skv // ngk
    ks = (lambda x, n, axis: torch.repeat_interleave(x, n, dim=axis))(k_scales, G, axis=2)
    kz = (lambda x, n, axis: torch.repeat_interleave(x, n, dim=axis))(k_zeros, G, axis=2)
    k = ((lambda x, dt: x.to(dt))(qk, q.dtype) - kz) * ks
    v = ((lambda x, dt: x.to(dt))(qv, q.dtype) - v_zeros) * v_scales
    rep = Hq // Hkv
    if rep > 1:
        k = (lambda x, n, axis: torch.repeat_interleave(x, n, dim=axis))(k, rep, axis=1)
        v = (lambda x, n, axis: torch.repeat_interleave(x, n, dim=axis))(v, rep, axis=1)
    scale = float(Dh) ** -0.5
    logits = torch.einsum("bhqd,bhkd->bhqk", q, k) * scale
    p = _softmax(logits, axis=-1)
    o = torch.einsum("bhqk,bhkd->bhqd", p, v)
    return o
```

```python
import sys, math
NAME = "standalone__kv_cache_quant_int4_int2_kv_with_per_channel_or_per_token_scales__prompt"

class Cfg:
    R = 4
    PD = 2
    UNROLL = 4
    dma_slots = (52, 54, 56, 58)
    bar_slot = 49
    vm_slot = 48
    force_safe = False
    timing = False

def f32bits(x):
    import struct
    return struct.unpack("<I", struct.pack("<f", x))[0]

class A:
    def __init__(self): self.l = []
    def __call__(self, s): self.l.append("    " + s)
    def lab(self, s): self.l.append(s + ":")
    def raw(self, s): self.l.append(s)
    def text(self): return "\n".join(self.l) + "\n"

def srd(a, d, lo, hi, nbytes):
    a(f"s_mov_b32 s{d}, {lo}")
    a(f"s_and_b32 s{d+1}, {hi}, 0xffff")
    a(f"s_mov_b32 s{d+2}, {nbytes}")
    a(f"s_mov_b32 s{d+3}, 0x00020000")

def unpack(a, lo, hi, src):
    a(f"v_lshlrev_b32 v{lo}, 16, v{src}")
    a(f"v_and_b32 v{hi}, 0xffff0000, v{src}")

def gen_prep(a, cfg):
    C = f32bits(math.log2(math.e) / math.sqrt(128.0))
    a.raw(".globl prep_kernel\n.p2align 8\n.type prep_kernel,@function")
    a.lab("prep_kernel")
    a("s_cmp_ge_u32 s2, 1024")
    a("s_cbranch_scc1 P_end")
    a("s_load_dwordx4 s[20:23], s[0:1], 8")
    a("s_load_dwordx8 s[24:31], s[0:1], 24")
    a("s_load_dwordx2 s[32:33], s[0:1], 72")
    a("v_lshrrev_b32 v1, 6, v0")
    a("v_and_b32 v0, 63, v0")
    a("v_readfirstlane_b32 s16, v1")
    a("v_and_b32 v1, 15, v0")
    a("v_lshrrev_b32 v2, 4, v0")
    a("s_lshr_b32 s17, s2, 8")
    a("s_lshr_b32 s18, s2, 2")
    a("s_and_b32 s18, s18, 63")
    a("s_and_b32 s19, s2, 3")
    a("s_lshl_b32 s34, s19, 2")
    a("s_add_u32 s34, s34, s16")
    a("s_lshl_b32 s35, s17, 11")
    a("s_lshl_b32 s36, s18, 5")
    a("s_add_u32 s35, s35, s36")
    a("s_waitcnt lgkmcnt(0)")
    srd(a, 12, "s32", "s33", 4 << 20)
    a("s_cmp_ge_u32 s19, 2")
    a("s_cbranch_scc1 P_v")
    srd(a, 4, "s20", "s21", 4 << 20)
    srd(a, 8, "s24", "s25", 2048)
    srd(a, 40, "s26", "s27", 2048)
    a("s_lshl_b32 s36, s19, 4")
    a("s_add_u32 s36, s36, s35")
    a("v_add_u32 v3, s36, v1")
    a("v_lshlrev_b32 v3, 9, v3")
    a("s_lshl_b32 s37, s16, 5")
    a("v_lshlrev_b32 v4, 3, v2")
    a("v_add_u32 v4, s37, v4")
    a("v_lshl_add_u32 v3, v4, 2, v3")
    a("buffer_load_dwordx4 v[8:11], v3, s[4:7], 0 offen")
    a("buffer_load_dwordx4 v[12:15], v3, s[4:7], 0 offen offset:16")
    a("s_lshr_b32 s37, s18, 5")
    a("s_lshl_b32 s38, s17, 1")
    a("s_add_u32 s37, s37, s38")
    a("s_lshl_b32 s37, s37, 8")
    a("v_lshlrev_b32 v5, 1, v4")
    a("v_add_u32 v5, s37, v5")
    a("buffer_load_dwordx4 v[16:19], v5, s[8:11], 0 offen")
    a("buffer_load_dwordx4 v[20:23], v5, s[40:43], 0 offen")
    a("s_add_u32 s37, s18, 62")
    a("s_and_b32 s37, s37, 63")
    a("s_lshl_b32 s38, s17, 6")
    a("s_add_u32 s37, s37, s38")
    a("s_lshl_b32 s37, s37, 4")
    a("s_add_u32 s37, s37, s34")
    a("s_lshl_b32 s37, s37, 10")
    a("v_lshlrev_b32 v6, 4, v0")
    a("v_add_u32 v6, s37, v6")
    a(f"s_mov_b32 s39, 0x{C:08x}")
    a("s_waitcnt vmcnt(0)")
    for p in range(4):
        x0, x1 = 8 + 2 * p, 9 + 2 * p
        a(f"v_cvt_f32_i32 v{x0}, v{x0}")
        a(f"v_cvt_f32_i32 v{x1}, v{x1}")
        a(f"v_cvt_pk_bf16_f32 v24, v{x0}, v{x1}")
        unpack(a, x0, x1, 24)
        unpack(a, 25, 26, 20 + p)
        a(f"v_sub_f32 v{x0}, v{x0}, v25")
        a(f"v_sub_f32 v{x1}, v{x1}, v26")
        a(f"v_cvt_pk_bf16_f32 v24, v{x0}, v{x1}")
        unpack(a, x0, x1, 24)
        unpack(a, 25, 26, 16 + p)
        a(f"v_mul_f32 v{x0}, v{x0}, v25")
        a(f"v_mul_f32 v{x1}, v{x1}, v26")
        a(f"v_cvt_pk_bf16_f32 v24, v{x0}, v{x1}")
        unpack(a, x0, x1, 24)
        a(f"v_mul_f32 v{x0}, s39, v{x0}")
        a(f"v_mul_f32 v{x1}, s39, v{x1}")
        a(f"v_cvt_pk_bf16_f32 v{28+p}, v{x0}, v{x1}")
    a("buffer_store_dwordx4 v[28:31], v6, s[12:15], 0 offen")
    a("s_endpgm")
    a.lab("P_v")
    srd(a, 4, "s22", "s23", 4 << 20)
    srd(a, 8, "s28", "s29", 16384)
    srd(a, 40, "s30", "s31", 16384)
    a("s_sub_u32 s36, s34, 8")
    a("s_lshr_b32 s37, s36, 1")
    a("s_lshl_b32 s37, s37, 5")
    a("s_and_b32 s38, s36, 1")
    a("s_lshl_b32 s38, s38, 2")
    a("s_add_u32 s37, s37, s38")
    a("v_lshrrev_b32 v3, 2, v1")
    a("v_lshlrev_b32 v3, 3, v3")
    a("v_and_b32 v4, 3, v1")
    a("v_add3_u32 v3, v3, v4, s37")
    a("v_lshlrev_b32 v4, 2, v2")
    a("v_add_u32 v4, s35, v4")
    a("v_lshlrev_b32 v5, 9, v4")
    a("v_lshl_add_u32 v5, v3, 2, v5")
    a("s_movk_i32 s38, 0x2000")
    for j in range(8):
        so = "0" if j < 4 else "s38"
        a(f"buffer_load_dword v{8+j}, v5, s[4:7], {so} offen offset:{(j&3)*512}")
    a("v_lshlrev_b32 v4, 1, v4")
    a("buffer_load_dwordx2 v[16:17], v4, s[8:11], 0 offen")
    a("buffer_load_dwordx2 v[18:19], v4, s[8:11], 0 offen offset:32")
    a("buffer_load_dwordx2 v[20:21], v4, s[40:43], 0 offen")
    a("buffer_load_dwordx2 v[22:23], v4, s[40:43], 0 offen offset:32")
    a("s_lshl_b32 s38, s17, 6")
    a("s_add_u32 s37, s18, s38")
    a("s_lshl_b32 s37, s37, 4")
    a("s_add_u32 s37, s37, s34")
    a("s_lshl_b32 s37, s37, 10")
    a("v_lshlrev_b32 v6, 4, v0")
    a("v_add_u32 v6, s37, v6")
    a("s_waitcnt vmcnt(0)")
    for p in range(4):
        x0, x1 = 8 + 2 * p, 9 + 2 * p
        a(f"v_cvt_f32_i32 v{x0}, v{x0}")
        a(f"v_cvt_f32_i32 v{x1}, v{x1}")
        a(f"v_cvt_pk_bf16_f32 v24, v{x0}, v{x1}")
        unpack(a, x0, x1, 24)
        unpack(a, 25, 26, 20 + p)
        a(f"v_sub_f32 v{x0}, v{x0}, v25")
        a(f"v_sub_f32 v{x1}, v{x1}, v26")
        a(f"v_cvt_pk_bf16_f32 v24, v{x0}, v{x1}")
        unpack(a, x0, x1, 24)
        unpack(a, 25, 26, 16 + p)
        a(f"v_mul_f32 v{x0}, v{x0}, v25")
        a(f"v_mul_f32 v{x1}, v{x1}, v26")
        a(f"v_cvt_pk_bf16_f32 v{28+p}, v{x0}, v{x1}")
    a("buffer_store_dwordx4 v[28:31], v6, s[12:15], 0 offen")
    a.lab("P_end")
    a("s_endpgm")

V_LANE16 = 1
V_LANE16H = 2
V_DMA = 3
V_L = 4
V_T = 8
SB = (16, 48)
PB = (80, 96)
V_C = 112
V_O = 128
A_Q = 0
A_K = 64
A_V = 80
NU = 64

def vr(b, n=4): return f"v[{b}:{b+n-1}]"
def ar(b, n=4): return f"a[{b}:{b+n-1}]"
def S(u, tb, qb): return SB[u % 2] + (tb * 4 + qb) * 4
def P(u, qb): return PB[u % 2] + qb * 4
def O(db, qb): return V_O + (db * 4 + qb) * 4
def Q(qb, s): return A_Q + (qb * 4 + s) * 4
MF = "v_mfma_f32_16x16x32_bf16"

class Track:
    def __init__(self): self.q = []
    def issue(self, tag): self.q.append(tag)
    def wait_count(self, tag):
        idx = max(i for i, t in enumerate(self.q) if t == tag)
        return len(self.q) - 1 - idx

def lds_read(a, cfg, lg, kind, unit, i):
    R = cfg.R
    if kind == "K":
        off = ((unit - 2) % R) * 16384 + i * 1024
        dst = A_K + ((unit * 8 + i) % 4) * 4
    else:
        off = (unit % R) * 16384 + 8192 + i * 1024
        dst = A_V + ((unit * 8 + i) % 4) * 4
    va = V_LANE16
    if off >= 65536:
        off -= 65536; va = V_LANE16H
    a(f"ds_read_b128 {ar(dst)}, v{va} offset:{off}")
    lg.issue((kind, unit, i))

def sm_elem(k):
    tb = k // 16; qb = (k // 4) % 4; r = k % 4
    return tb, qb, r

def emit_step(a, cfg, u, lg, vm, czero=False, extra=None):
    R, PD = cfg.R, cfg.PD
    qk = 0 <= u + 1 < NU
    sm = 0 <= u < NU
    smprev = 0 <= u - 1 < NU
    pv = 0 <= u - 1 < NU
    extra = extra or {}
    for slot in range(64):
        i = slot // 8; quad = (slot // 4) % 2; g = slot % 4; qb = g
        n = slot // 4
        if quad == 0:
            if qk:
                tb, s = i // 4, i % 4
                d = S(u + 1, tb, qb)
                c = vr(d) if s else ("0" if czero else vr(V_C + qb * 4))
                a(f"{MF} {vr(d)}, {ar(A_K + (((u+1)*8+i) % 4) * 4)}, {ar(Q(qb, s))}, {c}")
            else:
                a("s_nop 0")
        else:
            if pv:
                d = O(i, qb)
                a(f"{MF} {vr(d)}, {ar(A_V + (((u-1)*8+i) % 4) * 4)}, {vr(P(u-1, qb))}, {vr(d)}")
            else:
                a("s_nop 0")
        if g == 2:
            if quad == 0:
                if pv: a(f"s_waitcnt lgkmcnt({lg.wait_count(('V', u-1, i))})")
            else:
                nu, ni = (u + 1, i + 1) if i < 7 else (u + 2, 0)
                if 0 <= nu < NU: a(f"s_waitcnt lgkmcnt({lg.wait_count(('K', nu, ni))})")
        if slot == cfg.vm_slot and -1 <= u < NU:
            a(f"s_waitcnt vmcnt({vm.wait_count(('S', u))})")
        if slot == cfg.bar_slot and -1 <= u < NU:
            a("s_barrier")
        x = u - 2 + R
        if u >= 0 and x < NU:
            if slot == cfg.dma_slots[0] - 8:
                a("s_add_u32 s18, s18, 0x4000")
            if slot == cfg.dma_slots[0] - 7:
                a(f"s_add_u32 m0, s17, {(x % R) * 16384}")
            if slot in cfg.dma_slots:
                k = cfg.dma_slots.index(slot)
                a(f"buffer_load_dwordx4 v{V_DMA}, s[8:11], s18 offen offset:{k*1024} lds")
                vm.issue(('S', x))
        for e in extra.get(slot, []): a(e)
        if g == 3:
            if quad == 0:
                nu, ni = (u + 1, i + PD) if i + PD < 8 else (u + 2, i + PD - 8)
                if 0 <= nu < NU: lds_read(a, cfg, lg, "K", nu, ni)
            else:
                nu, ni = (u - 1, i + PD) if i + PD < 8 else (u, i + PD - 8)
                if 0 <= nu < NU: lds_read(a, cfg, lg, "V", nu, ni)
        if g in (0, 2):
            if sm:
                tb, q2, r = sm_elem(2 * n + g // 2)
                a(f"v_exp_f32 v{S(u,tb,q2)+r}, v{S(u,tb,q2)+r}")
        if g in (1, 3):
            if sm:
                tb, q2, r = sm_elem(2 * n + g // 2)
                a(f"v_add_f32 v{V_L+q2}, v{V_L+q2}, v{S(u,tb,q2)+r}")
        if g == 1:
            if n > 0:
                if sm:
                    tb, q2, r = sm_elem(2 * n - 2)
                    a(f"v_cvt_pk_bf16_f32 v{P(u,q2)+tb*2+r//2}, v{S(u,tb,q2)+r}, v{S(u,tb,q2)+r+1}")
            elif smprev:
                tb, q2, r = sm_elem(30)
                a(f"v_cvt_pk_bf16_f32 v{P(u-1,q2)+tb*2+r//2}, v{S(u-1,tb,q2)+r}, v{S(u-1,tb,q2)+r+1}")

def xlane(a, regs, tmps, op):
    for sw in ("v_permlane32_swap_b32", "v_permlane16_swap_b32"):
        for r, t in zip(regs, tmps): a(f"v_mov_b32 v{t}, v{r}")
        a("s_nop 1")
        for r, t in zip(regs, tmps): a(f"{sw} v{r}, v{t}")
        a("s_nop 1")
        for r, t in zip(regs, tmps): a(f"{op} v{r}, v{r}, v{t}")

def tile_max(a, u, dst):
    for qb in range(4):
        s0, s1 = S(u, 0, qb), S(u, 1, qb)
        a(f"v_max3_f32 v{dst+qb}, v{s0}, v{s0+1}, v{s0+2}")
        a(f"v_max3_f32 v{dst+qb}, v{dst+qb}, v{s0+3}, v{s1}")
        a(f"v_max3_f32 v{dst+qb}, v{dst+qb}, v{s1+1}, v{s1+2}")
        a(f"v_max_f32 v{dst+qb}, v{dst+qb}, v{s1+3}")

def gen_main(a, cfg):
    R = cfg.R
    K = NAME + "_kernel"
    a.raw(f".globl {K}\n.p2align 8\n.type {K},@function")
    a.lab(K)
    a("s_cmp_ge_u32 s2, 256")
    a("s_cbranch_scc1 M_end")
    a("s_load_dwordx2 s[20:21], s[0:1], 0")
    a("s_load_dwordx2 s[22:23], s[0:1], 56")
    a("s_load_dwordx2 s[24:25], s[0:1], 72")
    if cfg.timing:
        a("s_load_dwordx2 s[40:41], s[0:1], 72")
        a("s_memtime s[44:45]")
        a("s_memrealtime s[46:47]")
    a("v_lshrrev_b32 v4, 6, v0")
    a("v_and_b32 v0, 63, v0")
    a("v_readfirstlane_b32 s16, v4")
    a(f"v_lshlrev_b32 v{V_LANE16}, 4, v0")
    a(f"v_add_u32 v{V_LANE16H}, 0x10000, v{V_LANE16}")
    a("s_and_b32 s26, s2, 7")
    a("s_lshr_b32 s27, s2, 3")
    a("s_lshr_b32 s28, s26, 1")
    a("s_and_b32 s26, s26, 1")
    a("s_lshl_b32 s26, s26, 5")
    a("s_add_u32 s26, s26, s27")
    a("s_lshl_b32 s27, s28, 6")
    a("s_add_u32 s26, s26, s27")
    a("s_lshl_b32 s26, s26, 2")
    a("s_add_u32 s26, s26, s16")
    a("s_lshl_b32 s26, s26, 14")
    a("s_lshl_b32 s17, s16, 12")
    a(f"v_add_u32 v{V_DMA}, s17, v{V_LANE16}")
    a("s_lshl_b32 s29, s16, 11")
    a(f"v_add_u32 v8, s29, v{V_LANE16}")
    a("v_and_b32 v9, 15, v0")
    a("v_lshlrev_b32 v9, 8, v9")
    a("v_lshrrev_b32 v10, 4, v0")
    a("v_lshl_add_u32 v9, v10, 4, v9")
    a("v_add_u32 v10, 0x1000, v9")
    a("v_add_u32 v11, 0x2000, v9")
    a("v_add_u32 v12, 0x3000, v9")
    a("s_lshl_b32 s28, s28, 20")
    a("s_waitcnt lgkmcnt(0)")
    a("s_add_u32 s24, s24, s28")
    a("s_addc_u32 s25, s25, 0")
    srd(a, 8, "s24", "s25", 1 << 20)
    a("s_add_u32 s20, s20, s26")
    a("s_addc_u32 s21, s21, 0")
    srd(a, 4, "s20", "s21", 16384)
    a("s_add_u32 s22, s22, s26")
    a("s_addc_u32 s23, s23, 0")
    srd(a, 12, "s22", "s23", 16384)
    lg, vm = Track(), Track()
    a(f"s_add_u32 m0, s29, {(R-2)*16384}")
    a(f"s_mov_b32 s18, {62*16384}")
    for k in range(2):
        a(f"buffer_load_dwordx4 v8, s[8:11], s18 offen offset:{k*1024} lds"); vm.issue(('S', -2))
    for qb in range(4):
        for s in range(4):
            a(f"buffer_load_dwordx4 {ar(Q(qb,s))}, v{9+qb}, s[4:7], 0 offen offset:{s*64}"); vm.issue(('Q',))
    a(f"s_add_u32 m0, s29, {(R-1)*16384}")
    a(f"s_mov_b32 s18, {63*16384}")
    for k in range(2):
        a(f"buffer_load_dwordx4 v8, s[8:11], s18 offen offset:{k*1024} lds"); vm.issue(('S', -1))
    for x in range(R - 2):
        a(f"s_add_u32 m0, s17, {x*16384}")
        a(f"s_mov_b32 s18, {x*16384}")
        for k in range(4):
            a(f"buffer_load_dwordx4 v{V_DMA}, s[8:11], s18 offen offset:{k*1024} lds"); vm.issue(('S', x))
    for r in range(128): a(f"v_mov_b32 v{V_O+r}, 0")
    for r in range(4): a(f"v_mov_b32 v{V_L+r}, 0")
    a(f"s_waitcnt vmcnt({vm.wait_count(('Q',))})")
    a("s_barrier")
    for i in range(cfg.PD): lds_read(a, cfg, lg, "K", 0, i)
    a(f"s_waitcnt lgkmcnt({lg.wait_count(('K', 0, 0))})")
    emit_step(a, cfg, -1, lg, vm, czero=True)
    a("s_nop 7")
    tile_max(a, 0, V_T)
    xlane(a, [V_T + i for i in range(4)], [V_T + 4 + i for i in range(4)], "v_max_f32")
    for qb in range(4):
        for r in range(4): a(f"v_sub_f32 v{V_C+qb*4+r}, 0, v{V_T+qb}")
    for tb in range(2):
        for qb in range(4):
            for r in range(4): a(f"v_sub_f32 v{S(0,tb,qb)+r}, v{S(0,tb,qb)+r}, v{V_T+qb}")
    a("s_nop 1")
    U = cfg.UNROLL
    L0 = 2
    lastfull = NU - R + 1
    nit = (lastfull - (R - 3) - L0 + 1) // U
    nit = (min(lastfull, 62) - L0 + 1) // U
    steps = []
    for u in range(0, NU + 1):
        b = A()
        ex = {}
        if L0 <= u < L0 + nit * U and (u - L0) % U == U - 1:
            ex = {60: ["s_sub_u32 s19, s19, 1"], 61: ["s_cmp_lg_u32 s19, 0"]}
        emit_step(b, cfg, u, lg, vm, extra=ex)
        steps.append(b.l)
    for u in range(L0 + U, L0 + nit * U):
        assert steps[u] == steps[u - U], f"loop body mismatch at step {u}"
    for u in range(0, L0): a.l += steps[u]
    a(f"s_mov_b32 s19, {nit}")
    a.raw(".p2align 6")
    a.lab("M_loop")
    for u in range(L0, L0 + U): a.l += steps[u]
    a("s_cbranch_scc1 M_loop")
    for u in range(L0 + nit * U, NU + 1): a.l += steps[u]
    a("s_nop 7")
    xlane(a, [V_L + i for i in range(4)], [V_T + i for i in range(4)], "v_add_f32")
    a(f"v_max3_f32 v{V_T}, v{V_L}, v{V_L+1}, v{V_L+2}")
    a(f"v_add_f32 v{V_T+1}, v{V_L}, v{V_L+1}")
    a(f"v_add_f32 v{V_T+2}, v{V_L+2}, v{V_L+3}")
    a(f"v_add_f32 v{V_T+1}, v{V_T+1}, v{V_T+2}")
    a(f"v_mov_b32 v{V_T+3}, 0x{f32bits(2.0**26):08x}")
    a(f"v_cmp_nle_f32 vcc, v{V_T+1}, v{V_T+3}")
    if cfg.force_safe:
        a("s_branch M_safe")
    a("s_cbranch_vccnz M_safe")
    a.lab("M_fin")
    for qb in range(4): a(f"v_rcp_f32 v{V_T+qb}, v{V_L+qb}")
    a("s_nop 0")
    for qb in range(4):
        a(f"v_fma_f32 v{V_T+4+qb}, -v{V_L+qb}, v{V_T+qb}, 2.0")
    for qb in range(4):
        a(f"v_mul_f32 v{V_T+qb}, v{V_T+qb}, v{V_T+4+qb}")
    a("v_and_b32 v16, 15, v0")
    a("v_lshlrev_b32 v16, 8, v16")
    a("v_lshrrev_b32 v17, 4, v0")
    a("v_lshl_add_u32 v16, v17, 4, v16")
    a("v_add_u32 v17, 0x1000, v16")
    a("v_add_u32 v18, 0x2000, v16")
    a("v_add_u32 v19, 0x3000, v16")
    k = 0
    for qb in range(4):
        for m in range(4):
            t = 32 + (k % 8) * 4; k += 1
            for h in range(2):
                o = O(2 * m + h, qb)
                for r in range(4): a(f"v_mul_f32 v{o+r}, v{o+r}, v{V_T+qb}")
                a(f"v_cvt_pk_bf16_f32 v{t+2*h}, v{o}, v{o+1}")
                a(f"v_cvt_pk_bf16_f32 v{t+2*h+1}, v{o+2}, v{o+3}")
            a(f"buffer_store_dwordx4 {vr(t)}, v{16+qb}, s[12:15], 0 offen offset:{m*64}")
    if cfg.timing:
        a("s_waitcnt vmcnt(0)")
        a("s_memtime s[48:49]")
        a("s_memrealtime s[50:51]")
        a("s_waitcnt lgkmcnt(0)")
        a("s_add_u32 s40, s40, 0x1000000")
        a("s_addc_u32 s41, s41, 0")
        srd(a, 52, "s40", "s41", 1 << 20)
        a("s_sub_u32 s48, s48, s44")
        a("v_mov_b32 v4, s48")
        a("v_mov_b32 v5, s46")
        a("v_mov_b32 v6, s50")
        a("v_mov_b32 v7, 0")
        a("s_lshl_b32 s3, s2, 2")
        a("s_add_u32 s3, s3, s16")
        a("s_lshl_b32 s3, s3, 4")
        a("v_mov_b32 v8, s3")
        a("buffer_store_dwordx4 v[4:7], v8, s[52:55], 0 offen")
    a.lab("M_end")
    a("s_endpgm")
    a.lab("M_safe")
    VM = V_C
    VA = V_C + 4
    for r in range(128): a(f"v_mov_b32 v{V_O+r}, 0")
    for r in range(4): a(f"v_mov_b32 v{V_L+r}, 0")
    for r in range(4): a(f"v_mov_b32 v{VM+r}, 0xff800000")
    a("s_mov_b32 s19, 0")
    a.lab("M_safe_loop")
    a("s_add_u32 s26, s19, 62")
    a("s_and_b32 s26, s26, 63")
    a("s_lshl_b32 s26, s26, 14")
    a("s_add_u32 s27, s26, 0x1000")
    a("s_lshl_b32 s28, s19, 14")
    a("s_add_u32 s28, s28, 0x2000")
    a("s_add_u32 s29, s28, 0x1000")
    for i in range(8):
        a(f"buffer_load_dwordx4 {ar(128+i*4)}, v{V_LANE16}, s[8:11], s{26+i//4} offen offset:{(i%4)*1024}")
    for i in range(8):
        a(f"buffer_load_dwordx4 {ar(160+i*4)}, v{V_LANE16}, s[8:11], s{28+i//4} offen offset:{(i%4)*1024}")
    a("s_waitcnt vmcnt(0)")
    for i in range(8):
        tb, s = i // 4, i % 4
        for qb in range(4):
            d = S(0, tb, qb)
            a(f"{MF} {vr(d)}, {ar(128+i*4)}, {ar(Q(qb,s))}, {vr(d) if s else '0'}")
    a("s_nop 15")
    tile_max(a, 0, V_T)
    xlane(a, [V_T + i for i in range(4)], [V_T + 4 + i for i in range(4)], "v_max_f32")
    for qb in range(4): a(f"v_max_f32 v{V_T+qb}, v{V_T+qb}, v{VM+qb}")
    for qb in range(4): a(f"v_sub_f32 v{VA+qb}, v{VM+qb}, v{V_T+qb}")
    for qb in range(4): a(f"v_exp_f32 v{VA+qb}, v{VA+qb}")
    for qb in range(4): a(f"v_mov_b32 v{VM+qb}, v{V_T+qb}")
    for qb in range(4): a(f"v_mul_f32 v{V_L+qb}, v{V_L+qb}, v{VA+qb}")
    for db in range(8):
        for qb in range(4):
            for r in range(4): a(f"v_mul_f32 v{O(db,qb)+r}, v{O(db,qb)+r}, v{VA+qb}")
    for k in range(32):
        tb, qb, r = sm_elem(k)
        a(f"v_sub_f32 v{S(0,tb,qb)+r}, v{S(0,tb,qb)+r}, v{VM+qb}")
    for k in range(32):
        tb, qb, r = sm_elem(k)
        a(f"v_exp_f32 v{S(0,tb,qb)+r}, v{S(0,tb,qb)+r}")
    a("s_nop 0")
    for k in range(32):
        tb, qb, r = sm_elem(k)
        a(f"v_add_f32 v{V_L+qb}, v{V_L+qb}, v{S(0,tb,qb)+r}")
    for k in range(0, 32, 2):
        tb, qb, r = sm_elem(k)
        a(f"v_cvt_pk_bf16_f32 v{P(0,qb)+tb*2+r//2}, v{S(0,tb,qb)+r}, v{S(0,tb,qb)+r+1}")
    a("s_nop 1")
    for db in range(8):
        for qb in range(4):
            a(f"{MF} {vr(O(db,qb))}, {ar(160+db*4)}, {vr(P(0,qb))}, {vr(O(db,qb))}")
    a("s_nop 15")
    a("s_add_u32 s19, s19, 1")
    a("s_cmp_lt_u32 s19, 64")
    a("s_cbranch_scc1 M_safe_loop")
    xlane(a, [V_L + i for i in range(4)], [V_T + i for i in range(4)], "v_add_f32")
    a("s_branch M_fin")

def kd(name, vgpr, accum, sgpr=102):
    return f""".p2align 6
.amdhsa_kernel {name}
  .amdhsa_next_free_vgpr {vgpr}
  .amdhsa_next_free_sgpr {sgpr}
  .amdhsa_accum_offset {accum}
  .amdhsa_group_segment_fixed_size 0
  .amdhsa_kernarg_size 80
  .amdhsa_user_sgpr_count 2
  .amdhsa_user_sgpr_kernarg_segment_ptr 1
  .amdhsa_system_sgpr_workgroup_id_x 1
  .amdhsa_float_denorm_mode_32 3
.end_amdhsa_kernel
"""

def generate(cfg):
    hdr = open("cdna_kernels/" + NAME + ".s.ref").read().split("; Override launch")[0]
    a = A()
    gen_prep(a, cfg)
    gen_main(a, cfg)
    out = hdr
    out += "; @launch kernel=prep_kernel grid=(1024,1,1) block=(256,1,1) lds=0\n"
    out += f"; @launch kernel={NAME}_kernel grid=(256,1,1) block=(256,1,1) lds={cfg.R*16384}\n"
    out += '.amdgcn_target "amdgcn-amd-amdhsa--gfx950"\n.text\n'
    out += a.text()
    out += '.section .rodata,"a"\n'
    out += kd("prep_kernel", 32, 32, 64)
    out += kd(NAME + "_kernel", 256 + 192, 256)
    return out

if __name__ == "__main__":
    cfg = Cfg()
    outp = sys.argv[1]
    for kv in sys.argv[2:]:
        k, v = kv.split("=")
        setattr(cfg, k, eval(v))
    open(outp, "w").write(generate(cfg))
```

```python
import sys, math
NAME = "standalone__kv_cache_quant_int4_int2_kv_with_per_channel_or_per_token_scales__prompt"

class Cfg:
    R = 4
    PD = 2
    UNROLL = 4
    dma_slots = (52, 54, 56, 58)
    bar_slot = 49
    vm_slot = 48
    force_safe = False
    timing = False
    no_dma = False
    no_bar = False
    no_vm = False
    pstamps = False
    q_nt = ''
    p_nt = ''
    o_nt = ''
    w_nt = ''

def f32bits(x):
    import struct
    return struct.unpack("<I", struct.pack("<f", x))[0]

class A:
    def __init__(self): self.l = []
    def __call__(self, s): self.l.append("    " + s)
    def lab(self, s): self.l.append(s + ":")
    def raw(self, s): self.l.append(s)
    def text(self): return "\n".join(self.l) + "\n"

def srd(a, d, lo, hi, nbytes):
    a(f"s_mov_b32 s{d}, {lo}")
    a(f"s_and_b32 s{d+1}, {hi}, 0xffff")
    a(f"s_mov_b32 s{d+2}, {nbytes}")
    a(f"s_mov_b32 s{d+3}, 0x00020000")

def unpack(a, lo, hi, src):
    a(f"v_lshlrev_b32 v{lo}, 16, v{src}")
    a(f"v_and_b32 v{hi}, 0xffff0000, v{src}")

def gen_prep(a, cfg):
    C = f32bits(math.log2(math.e) / math.sqrt(128.0))
    a.raw(".globl prep_kernel\n.p2align 8\n.type prep_kernel,@function")
    a.lab("prep_kernel")
    a("s_cmp_ge_u32 s2, 1024")
    a("s_cbranch_scc1 P_end")
    a("s_load_dwordx4 s[20:23], s[0:1], 8")
    a("s_load_dwordx8 s[24:31], s[0:1], 24")
    a("s_load_dwordx2 s[32:33], s[0:1], 72")
    a("v_lshrrev_b32 v1, 6, v0")
    a("v_and_b32 v0, 63, v0")
    a("v_readfirstlane_b32 s16, v1")
    a("v_and_b32 v1, 15, v0")
    a("v_lshrrev_b32 v2, 4, v0")
    a("s_lshr_b32 s17, s2, 8")
    a("s_lshr_b32 s18, s2, 2")
    a("s_and_b32 s18, s18, 63")
    a("s_and_b32 s19, s2, 3")
    a("s_lshl_b32 s34, s19, 2")
    a("s_add_u32 s34, s34, s16")
    a("s_lshl_b32 s35, s17, 11")
    a("s_lshl_b32 s36, s18, 5")
    a("s_add_u32 s35, s35, s36")
    a("s_waitcnt lgkmcnt(0)")
    srd(a, 12, "s32", "s33", 4 << 20)
    a("s_cmp_ge_u32 s19, 2")
    a("s_cbranch_scc1 P_v")
    srd(a, 4, "s20", "s21", 4 << 20)
    srd(a, 8, "s24", "s25", 2048)
    srd(a, 40, "s26", "s27", 2048)
    a("s_lshl_b32 s36, s19, 4")
    a("s_add_u32 s36, s36, s35")
    a("v_add_u32 v3, s36, v1")
    a("v_lshlrev_b32 v3, 9, v3")
    a("s_lshl_b32 s37, s16, 5")
    a("v_lshlrev_b32 v4, 3, v2")
    a("v_add_u32 v4, s37, v4")
    a("v_lshl_add_u32 v3, v4, 2, v3")
    a(f"buffer_load_dwordx4 v[8:11], v3, s[4:7], 0 offen{cfg.p_nt}")
    a(f"buffer_load_dwordx4 v[12:15], v3, s[4:7], 0 offen offset:16{cfg.p_nt}")
    a("s_lshr_b32 s37, s18, 5")
    a("s_lshl_b32 s38, s17, 1")
    a("s_add_u32 s37, s37, s38")
    a("s_lshl_b32 s37, s37, 8")
    a("v_lshlrev_b32 v5, 1, v4")
    a("v_add_u32 v5, s37, v5")
    a("buffer_load_dwordx4 v[16:19], v5, s[8:11], 0 offen")
    a("buffer_load_dwordx4 v[20:23], v5, s[40:43], 0 offen")
    a("s_add_u32 s37, s18, 62")
    a("s_and_b32 s37, s37, 63")
    a("s_lshl_b32 s38, s17, 6")
    a("s_add_u32 s37, s37, s38")
    a("s_lshl_b32 s37, s37, 4")
    a("s_add_u32 s37, s37, s34")
    a("s_lshl_b32 s37, s37, 10")
    a("v_lshlrev_b32 v6, 4, v0")
    a("v_add_u32 v6, s37, v6")
    a(f"s_mov_b32 s39, 0x{C:08x}")
    a("s_waitcnt vmcnt(0)")
    for p in range(4):
        x0, x1 = 8 + 2 * p, 9 + 2 * p
        a(f"v_cvt_f32_i32 v{x0}, v{x0}")
        a(f"v_cvt_f32_i32 v{x1}, v{x1}")
        a(f"v_cvt_pk_bf16_f32 v24, v{x0}, v{x1}")
        unpack(a, x0, x1, 24)
        unpack(a, 25, 26, 20 + p)
        a(f"v_sub_f32 v{x0}, v{x0}, v25")
        a(f"v_sub_f32 v{x1}, v{x1}, v26")
        a(f"v_cvt_pk_bf16_f32 v24, v{x0}, v{x1}")
        unpack(a, x0, x1, 24)
        unpack(a, 25, 26, 16 + p)
        a(f"v_mul_f32 v{x0}, v{x0}, v25")
        a(f"v_mul_f32 v{x1}, v{x1}, v26")
        a(f"v_cvt_pk_bf16_f32 v24, v{x0}, v{x1}")
        unpack(a, x0, x1, 24)
        a(f"v_mul_f32 v{x0}, s39, v{x0}")
        a(f"v_mul_f32 v{x1}, s39, v{x1}")
        a(f"v_cvt_pk_bf16_f32 v{28+p}, v{x0}, v{x1}")
    a(f"buffer_store_dwordx4 v[28:31], v6, s[12:15], 0 offen{cfg.w_nt}")
    a("s_endpgm")
    a.lab("P_v")
    srd(a, 4, "s22", "s23", 4 << 20)
    srd(a, 8, "s28", "s29", 16384)
    srd(a, 40, "s30", "s31", 16384)
    a("s_sub_u32 s36, s34, 8")
    a("s_lshr_b32 s37, s36, 1")
    a("s_lshl_b32 s37, s37, 5")
    a("s_and_b32 s38, s36, 1")
    a("s_lshl_b32 s38, s38, 2")
    a("s_add_u32 s37, s37, s38")
    a("v_lshrrev_b32 v3, 2, v1")
    a("v_lshlrev_b32 v3, 3, v3")
    a("v_and_b32 v4, 3, v1")
    a("v_add3_u32 v3, v3, v4, s37")
    a("v_lshlrev_b32 v4, 2, v2")
    a("v_add_u32 v4, s35, v4")
    a("v_lshlrev_b32 v5, 9, v4")
    a("v_lshl_add_u32 v5, v3, 2, v5")
    a("s_movk_i32 s38, 0x2000")
    for j in range(8):
        so = "0" if j < 4 else "s38"
        a(f"buffer_load_dword v{8+j}, v5, s[4:7], {so} offen offset:{(j&3)*512}{cfg.p_nt}")
    a("v_lshlrev_b32 v4, 1, v4")
    a("buffer_load_dwordx2 v[16:17], v4, s[8:11], 0 offen")
    a("buffer_load_dwordx2 v[18:19], v4, s[8:11], 0 offen offset:32")
    a("buffer_load_dwordx2 v[20:21], v4, s[40:43], 0 offen")
    a("buffer_load_dwordx2 v[22:23], v4, s[40:43], 0 offen offset:32")
    a("s_lshl_b32 s38, s17, 6")
    a("s_add_u32 s37, s18, s38")
    a("s_lshl_b32 s37, s37, 4")
    a("s_add_u32 s37, s37, s34")
    a("s_lshl_b32 s37, s37, 10")
    a("v_lshlrev_b32 v6, 4, v0")
    a("v_add_u32 v6, s37, v6")
    a("s_waitcnt vmcnt(0)")
    for p in range(4):
        x0, x1 = 8 + 2 * p, 9 + 2 * p
        a(f"v_cvt_f32_i32 v{x0}, v{x0}")
        a(f"v_cvt_f32_i32 v{x1}, v{x1}")
        a(f"v_cvt_pk_bf16_f32 v24, v{x0}, v{x1}")
        unpack(a, x0, x1, 24)
        unpack(a, 25, 26, 20 + p)
        a(f"v_sub_f32 v{x0}, v{x0}, v25")
        a(f"v_sub_f32 v{x1}, v{x1}, v26")
        a(f"v_cvt_pk_bf16_f32 v24, v{x0}, v{x1}")
        unpack(a, x0, x1, 24)
        unpack(a, 25, 26, 16 + p)
        a(f"v_mul_f32 v{x0}, v{x0}, v25")
        a(f"v_mul_f32 v{x1}, v{x1}, v26")
        a(f"v_cvt_pk_bf16_f32 v{28+p}, v{x0}, v{x1}")
    a(f"buffer_store_dwordx4 v[28:31], v6, s[12:15], 0 offen{cfg.w_nt}")
    a.lab("P_end")
    a("s_endpgm")

V_LANE16 = 1
V_LANE16H = 2
V_DMA = 3
V_L = 4
V_T = 8
SB = (16, 48)
PB = (80, 96)
V_C = 112
V_O = 128
A_Q = 0
A_K = 64
A_V = 80
NU = 64

def vr(b, n=4): return f"v[{b}:{b+n-1}]"
def ar(b, n=4): return f"a[{b}:{b+n-1}]"
def S(u, tb, qb): return SB[u % 2] + (tb * 4 + qb) * 4
def P(u, qb): return PB[u % 2] + qb * 4
def O(db, qb): return V_O + (db * 4 + qb) * 4
def Q(qb, s): return A_Q + (qb * 4 + s) * 4
MF = "v_mfma_f32_16x16x32_bf16"

class Track:
    def __init__(self): self.q = []
    def issue(self, tag): self.q.append(tag)
    def wait_count(self, tag):
        idx = max(i for i, t in enumerate(self.q) if t == tag)
        return len(self.q) - 1 - idx

def lds_read(a, cfg, lg, kind, unit, i):
    R = cfg.R
    if kind == "K":
        off = ((unit - 2) % R) * 16384 + i * 1024
        dst = A_K + ((unit * 8 + i) % 4) * 4
    else:
        off = (unit % R) * 16384 + 8192 + i * 1024
        dst = A_V + ((unit * 8 + i) % 4) * 4
    va = V_LANE16
    if off >= 65536:
        off -= 65536; va = V_LANE16H
    a(f"ds_read_b128 {ar(dst)}, v{va} offset:{off}")
    lg.issue((kind, unit, i))

def sm_elem(k):
    tb = k // 16; qb = (k // 4) % 4; r = k % 4
    return tb, qb, r

def emit_step(a, cfg, u, lg, vm, czero=False, extra=None):
    R, PD = cfg.R, cfg.PD
    qk = 0 <= u + 1 < NU
    sm = 0 <= u < NU
    smprev = 0 <= u - 1 < NU
    pv = 0 <= u - 1 < NU
    extra = extra or {}
    for slot in range(64):
        i = slot // 8; quad = (slot // 4) % 2; g = slot % 4; qb = g
        n = slot // 4
        if quad == 0:
            if qk:
                tb, s = i // 4, i % 4
                d = S(u + 1, tb, qb)
                c = vr(d) if s else ("0" if czero else vr(V_C + qb * 4))
                a(f"{MF} {vr(d)}, {ar(A_K + (((u+1)*8+i) % 4) * 4)}, {ar(Q(qb, s))}, {c}")
            else:
                a("s_nop 0")
        else:
            if pv:
                d = O(i, qb)
                a(f"{MF} {vr(d)}, {ar(A_V + (((u-1)*8+i) % 4) * 4)}, {vr(P(u-1, qb))}, {vr(d)}")
            else:
                a("s_nop 0")
        if g == 2:
            if quad == 0:
                if pv: a(f"s_waitcnt lgkmcnt({lg.wait_count(('V', u-1, i))})")
            else:
                nu, ni = (u + 1, i + 1) if i < 7 else (u + 2, 0)
                if 0 <= nu < NU: a(f"s_waitcnt lgkmcnt({lg.wait_count(('K', nu, ni))})")
        if slot == cfg.vm_slot and -1 <= u < NU and not (cfg.no_vm and u > 2):
            a(f"s_waitcnt vmcnt({vm.wait_count(('S', u))})")
        if slot == cfg.bar_slot and -1 <= u < NU and not (cfg.no_bar and u > 1):
            a("s_barrier")
        x = u - 2 + R
        if u >= 0 and x < NU:
            if slot == cfg.dma_slots[0] - 8:
                a("s_add_u32 s18, s18, 0x4000")
            if slot == cfg.dma_slots[0] - 7:
                a(f"s_add_u32 m0, s17, {(x % R) * 16384}")
            if slot in cfg.dma_slots:
                k = cfg.dma_slots.index(slot)
                if not cfg.no_dma: a(f"buffer_load_dwordx4 v{V_DMA}, s[8:11], s18 offen offset:{k*1024} lds")
                vm.issue(('S', x))
        for e in extra.get(slot, []): a(e)
        if g == 3:
            if quad == 0:
                nu, ni = (u + 1, i + PD) if i + PD < 8 else (u + 2, i + PD - 8)
                if 0 <= nu < NU: lds_read(a, cfg, lg, "K", nu, ni)
            else:
                nu, ni = (u - 1, i + PD) if i + PD < 8 else (u, i + PD - 8)
                if 0 <= nu < NU: lds_read(a, cfg, lg, "V", nu, ni)
        if g in (0, 2):
            if sm:
                tb, q2, r = sm_elem(2 * n + g // 2)
                a(f"v_exp_f32 v{S(u,tb,q2)+r}, v{S(u,tb,q2)+r}")
        if g in (1, 3):
            if sm:
                tb, q2, r = sm_elem(2 * n + g // 2)
                a(f"v_add_f32 v{V_L+q2}, v{V_L+q2}, v{S(u,tb,q2)+r}")
        if g == 1:
            if n > 0:
                if sm:
                    tb, q2, r = sm_elem(2 * n - 2)
                    a(f"v_cvt_pk_bf16_f32 v{P(u,q2)+tb*2+r//2}, v{S(u,tb,q2)+r}, v{S(u,tb,q2)+r+1}")
            elif smprev:
                tb, q2, r = sm_elem(30)
                a(f"v_cvt_pk_bf16_f32 v{P(u-1,q2)+tb*2+r//2}, v{S(u-1,tb,q2)+r}, v{S(u-1,tb,q2)+r+1}")

def stamp(a, cfg, idx, p=False):
    if cfg.timing and (p == cfg.pstamps):
        a(f"s_memtime s[{60+2*idx}:{61+2*idx}]")
        a("s_waitcnt lgkmcnt(0)")

def xlane(a, regs, tmps, op):
    for sw in ("v_permlane32_swap_b32", "v_permlane16_swap_b32"):
        for r, t in zip(regs, tmps): a(f"v_mov_b32 v{t}, v{r}")
        a("s_nop 1")
        for r, t in zip(regs, tmps): a(f"{sw} v{r}, v{t}")
        a("s_nop 1")
        for r, t in zip(regs, tmps): a(f"{op} v{r}, v{r}, v{t}")

def tile_max(a, u, dst):
    for qb in range(4):
        s0, s1 = S(u, 0, qb), S(u, 1, qb)
        a(f"v_max3_f32 v{dst+qb}, v{s0}, v{s0+1}, v{s0+2}")
        a(f"v_max3_f32 v{dst+qb}, v{dst+qb}, v{s0+3}, v{s1}")
        a(f"v_max3_f32 v{dst+qb}, v{dst+qb}, v{s1+1}, v{s1+2}")
        a(f"v_max_f32 v{dst+qb}, v{dst+qb}, v{s1+3}")

def gen_main(a, cfg):
    R = cfg.R
    K = NAME + "_kernel"
    a.raw(f".globl {K}\n.p2align 8\n.type {K},@function")
    a.lab(K)
    a("s_cmp_ge_u32 s2, 256")
    a("s_cbranch_scc1 M_end")
    a("s_load_dwordx2 s[20:21], s[0:1], 0")
    a("s_load_dwordx2 s[22:23], s[0:1], 56")
    a("s_load_dwordx2 s[24:25], s[0:1], 72")
    if cfg.timing:
        a("s_load_dwordx2 s[40:41], s[0:1], 72")
        a("s_memtime s[44:45]")
        a("s_memrealtime s[46:47]")
    a("v_lshrrev_b32 v4, 6, v0")
    a("v_and_b32 v0, 63, v0")
    a("v_readfirstlane_b32 s16, v4")
    a(f"v_lshlrev_b32 v{V_LANE16}, 4, v0")
    a(f"v_add_u32 v{V_LANE16H}, 0x10000, v{V_LANE16}")
    a("s_and_b32 s26, s2, 7")
    a("s_lshr_b32 s27, s2, 3")
    a("s_lshr_b32 s28, s26, 1")
    a("s_and_b32 s26, s26, 1")
    a("s_lshl_b32 s26, s26, 5")
    a("s_add_u32 s26, s26, s27")
    a("s_lshl_b32 s27, s28, 6")
    a("s_add_u32 s26, s26, s27")
    a("s_lshl_b32 s26, s26, 2")
    a("s_add_u32 s26, s26, s16")
    a("s_lshl_b32 s26, s26, 14")
    a("s_lshl_b32 s17, s16, 12")
    a(f"v_add_u32 v{V_DMA}, s17, v{V_LANE16}")
    a("s_lshl_b32 s29, s16, 11")
    a(f"v_add_u32 v8, s29, v{V_LANE16}")
    a("v_and_b32 v9, 15, v0")
    a("v_lshlrev_b32 v9, 8, v9")
    a("v_lshrrev_b32 v10, 4, v0")
    a("v_lshl_add_u32 v9, v10, 4, v9")
    a("v_add_u32 v10, 0x1000, v9")
    a("v_add_u32 v11, 0x2000, v9")
    a("v_add_u32 v12, 0x3000, v9")
    a("s_lshl_b32 s28, s28, 20")
    a("s_waitcnt lgkmcnt(0)")
    stamp(a, cfg, 0, True)
    a("s_add_u32 s24, s24, s28")
    a("s_addc_u32 s25, s25, 0")
    srd(a, 8, "s24", "s25", 1 << 20)
    a("s_add_u32 s20, s20, s26")
    a("s_addc_u32 s21, s21, 0")
    srd(a, 4, "s20", "s21", 16384)
    a("s_add_u32 s22, s22, s26")
    a("s_addc_u32 s23, s23, 0")
    srd(a, 12, "s22", "s23", 16384)
    lg, vm = Track(), Track()
    a(f"s_add_u32 m0, s29, {(R-2)*16384}")
    a(f"s_mov_b32 s18, {62*16384}")
    for k in range(2):
        a(f"buffer_load_dwordx4 v8, s[8:11], s18 offen offset:{k*1024} lds"); vm.issue(('S', -2))
    for qb in range(4):
        for s in range(4):
            a(f"buffer_load_dwordx4 {ar(Q(qb,s))}, v{9+qb}, s[4:7], 0 offen offset:{s*64}{cfg.q_nt}"); vm.issue(('Q',))
    a(f"s_add_u32 m0, s29, {(R-1)*16384}")
    a(f"s_mov_b32 s18, {63*16384}")
    for k in range(2):
        a(f"buffer_load_dwordx4 v8, s[8:11], s18 offen offset:{k*1024} lds"); vm.issue(('S', -1))
    for x in range(R - 2):
        a(f"s_add_u32 m0, s17, {x*16384}")
        a(f"s_mov_b32 s18, {x*16384}")
        for k in range(4):
            a(f"buffer_load_dwordx4 v{V_DMA}, s[8:11], s18 offen offset:{k*1024} lds"); vm.issue(('S', x))
    stamp(a, cfg, 1, True)
    for r in range(128): a(f"v_mov_b32 v{V_O+r}, 0")
    for r in range(4): a(f"v_mov_b32 v{V_L+r}, 0")
    if cfg.pstamps:
        a(f"s_waitcnt vmcnt({vm.wait_count(('S',-2))})")
        stamp(a, cfg, 2, True)
    a(f"s_waitcnt vmcnt({vm.wait_count(('Q',))})")
    stamp(a, cfg, 3, True)
    a("s_barrier")
    stamp(a, cfg, 0)
    for i in range(cfg.PD): lds_read(a, cfg, lg, "K", 0, i)
    a(f"s_waitcnt lgkmcnt({lg.wait_count(('K', 0, 0))})")
    emit_step(a, cfg, -1, lg, vm, czero=True)
    a("s_nop 7")
    tile_max(a, 0, V_T)
    xlane(a, [V_T + i for i in range(4)], [V_T + 4 + i for i in range(4)], "v_max_f32")
    for qb in range(4):
        for r in range(4): a(f"v_sub_f32 v{V_C+qb*4+r}, 0, v{V_T+qb}")
    for tb in range(2):
        for qb in range(4):
            for r in range(4): a(f"v_sub_f32 v{S(0,tb,qb)+r}, v{S(0,tb,qb)+r}, v{V_T+qb}")
    a("s_nop 1")
    U = cfg.UNROLL
    L0 = 2
    lastfull = NU - R + 1
    nit = (lastfull - (R - 3) - L0 + 1) // U
    nit = (min(lastfull, 62) - L0 + 1) // U
    steps = []
    for u in range(0, NU + 1):
        b = A()
        ex = {}
        if L0 <= u < L0 + nit * U and (u - L0) % U == U - 1:
            ex = {60: ["s_sub_u32 s19, s19, 1"], 61: ["s_cmp_lg_u32 s19, 0"]}
        emit_step(b, cfg, u, lg, vm, extra=ex)
        steps.append(b.l)
    for u in range(L0 + U, L0 + nit * U):
        assert steps[u] == steps[u - U], f"loop body mismatch at step {u}"
    for u in range(0, L0): a.l += steps[u]
    a(f"s_mov_b32 s19, {nit}")
    stamp(a, cfg, 1)
    a.raw(".p2align 6")
    a.lab("M_loop")
    for u in range(L0, L0 + U): a.l += steps[u]
    a("s_cbranch_scc1 M_loop")
    stamp(a, cfg, 2)
    for u in range(L0 + nit * U, NU + 1): a.l += steps[u]
    a("s_nop 7")
    stamp(a, cfg, 3)
    xlane(a, [V_L + i for i in range(4)], [V_T + i for i in range(4)], "v_add_f32")
    a(f"v_max3_f32 v{V_T}, v{V_L}, v{V_L+1}, v{V_L+2}")
    a(f"v_add_f32 v{V_T+1}, v{V_L}, v{V_L+1}")
    a(f"v_add_f32 v{V_T+2}, v{V_L+2}, v{V_L+3}")
    a(f"v_add_f32 v{V_T+1}, v{V_T+1}, v{V_T+2}")
    a(f"v_mov_b32 v{V_T+3}, 0x{f32bits(2.0**26):08x}")
    a(f"v_cmp_nle_f32 vcc, v{V_T+1}, v{V_T+3}")
    if cfg.force_safe:
        a("s_branch M_safe")
    a("s_cbranch_vccnz M_safe")
    a.lab("M_fin")
    for qb in range(4): a(f"v_rcp_f32 v{V_T+qb}, v{V_L+qb}")
    a("s_nop 0")
    for qb in range(4):
        a(f"v_fma_f32 v{V_T+4+qb}, -v{V_L+qb}, v{V_T+qb}, 2.0")
    for qb in range(4):
        a(f"v_mul_f32 v{V_T+qb}, v{V_T+qb}, v{V_T+4+qb}")
    a("v_and_b32 v16, 15, v0")
    a("v_lshlrev_b32 v16, 8, v16")
    a("v_lshrrev_b32 v17, 4, v0")
    a("v_lshl_add_u32 v16, v17, 4, v16")
    a("v_add_u32 v17, 0x1000, v16")
    a("v_add_u32 v18, 0x2000, v16")
    a("v_add_u32 v19, 0x3000, v16")
    k = 0
    for qb in range(4):
        for m in range(4):
            t = 32 + (k % 8) * 4; k += 1
            for h in range(2):
                o = O(2 * m + h, qb)
                for r in range(4): a(f"v_mul_f32 v{o+r}, v{o+r}, v{V_T+qb}")
                a(f"v_cvt_pk_bf16_f32 v{t+2*h}, v{o}, v{o+1}")
                a(f"v_cvt_pk_bf16_f32 v{t+2*h+1}, v{o+2}, v{o+3}")
            a(f"buffer_store_dwordx4 {vr(t)}, v{16+qb}, s[12:15], 0 offen offset:{m*64}{cfg.o_nt}")
    if cfg.timing:
        a("s_waitcnt vmcnt(0)")
        a("s_memtime s[48:49]")
        a("s_memrealtime s[50:51]")
        a("s_waitcnt lgkmcnt(0)")
        a("s_add_u32 s40, s40, 0x1000000")
        a("s_addc_u32 s41, s41, 0")
        srd(a, 52, "s40", "s41", 1 << 20)
        a("s_sub_u32 s48, s48, s44")
        a("v_mov_b32 v4, s48")
        a("v_mov_b32 v5, s46")
        a("v_mov_b32 v6, s50")
        a("v_mov_b32 v7, 0")
        a("s_lshl_b32 s3, s2, 2")
        a("s_add_u32 s3, s3, s16")
        a("s_lshl_b32 s3, s3, 5")
        a("v_mov_b32 v8, s3")
        a("buffer_store_dwordx4 v[4:7], v8, s[52:55], 0 offen")
        for i in range(4):
            a(f"s_sub_u32 s{60+2*i}, s{60+2*i}, s44")
            a(f"v_mov_b32 v{10+i}, s{60+2*i}")
        a("s_nop 1")
        a("buffer_store_dwordx4 v[10:13], v8, s[52:55], 0 offen offset:16")
    a.lab("M_end")
    a("s_endpgm")
    a.lab("M_safe")
    VM = V_C
    VA = V_C + 4
    for r in range(128): a(f"v_mov_b32 v{V_O+r}, 0")
    for r in range(4): a(f"v_mov_b32 v{V_L+r}, 0")
    for r in range(4): a(f"v_mov_b32 v{VM+r}, 0xff800000")
    a("s_mov_b32 s19, 0")
    a.lab("M_safe_loop")
    a("s_add_u32 s26, s19, 62")
    a("s_and_b32 s26, s26, 63")
    a("s_lshl_b32 s26, s26, 14")
    a("s_add_u32 s27, s26, 0x1000")
    a("s_lshl_b32 s28, s19, 14")
    a("s_add_u32 s28, s28, 0x2000")
    a("s_add_u32 s29, s28, 0x1000")
    for i in range(8):
        a(f"buffer_load_dwordx4 {ar(128+i*4)}, v{V_LANE16}, s[8:11], s{26+i//4} offen offset:{(i%4)*1024}")
    for i in range(8):
        a(f"buffer_load_dwordx4 {ar(160+i*4)}, v{V_LANE16}, s[8:11], s{28+i//4} offen offset:{(i%4)*1024}")
    a("s_waitcnt vmcnt(0)")
    for i in range(8):
        tb, s = i // 4, i % 4
        for qb in range(4):
            d = S(0, tb, qb)
            a(f"{MF} {vr(d)}, {ar(128+i*4)}, {ar(Q(qb,s))}, {vr(d) if s else '0'}")
    a("s_nop 15")
    tile_max(a, 0, V_T)
    xlane(a, [V_T + i for i in range(4)], [V_T + 4 + i for i in range(4)], "v_max_f32")
    for qb in range(4): a(f"v_max_f32 v{V_T+qb}, v{V_T+qb}, v{VM+qb}")
    for qb in range(4): a(f"v_sub_f32 v{VA+qb}, v{VM+qb}, v{V_T+qb}")
    for qb in range(4): a(f"v_exp_f32 v{VA+qb}, v{VA+qb}")
    for qb in range(4): a(f"v_mov_b32 v{VM+qb}, v{V_T+qb}")
    for qb in range(4): a(f"v_mul_f32 v{V_L+qb}, v{V_L+qb}, v{VA+qb}")
    for db in range(8):
        for qb in range(4):
            for r in range(4): a(f"v_mul_f32 v{O(db,qb)+r}, v{O(db,qb)+r}, v{VA+qb}")
    for k in range(32):
        tb, qb, r = sm_elem(k)
        a(f"v_sub_f32 v{S(0,tb,qb)+r}, v{S(0,tb,qb)+r}, v{VM+qb}")
    for k in range(32):
        tb, qb, r = sm_elem(k)
        a(f"v_exp_f32 v{S(0,tb,qb)+r}, v{S(0,tb,qb)+r}")
    a("s_nop 0")
    for k in range(32):
        tb, qb, r = sm_elem(k)
        a(f"v_add_f32 v{V_L+qb}, v{V_L+qb}, v{S(0,tb,qb)+r}")
    for k in range(0, 32, 2):
        tb, qb, r = sm_elem(k)
        a(f"v_cvt_pk_bf16_f32 v{P(0,qb)+tb*2+r//2}, v{S(0,tb,qb)+r}, v{S(0,tb,qb)+r+1}")
    a("s_nop 1")
    for db in range(8):
        for qb in range(4):
            a(f"{MF} {vr(O(db,qb))}, {ar(160+db*4)}, {vr(P(0,qb))}, {vr(O(db,qb))}")
    a("s_nop 15")
    a("s_add_u32 s19, s19, 1")
    a("s_cmp_lt_u32 s19, 64")
    a("s_cbranch_scc1 M_safe_loop")
    xlane(a, [V_L + i for i in range(4)], [V_T + i for i in range(4)], "v_add_f32")
    a("s_branch M_fin")

def kd(name, vgpr, accum, sgpr=102):
    return f""".p2align 6
.amdhsa_kernel {name}
  .amdhsa_next_free_vgpr {vgpr}
  .amdhsa_next_free_sgpr {sgpr}
  .amdhsa_accum_offset {accum}
  .amdhsa_group_segment_fixed_size 0
  .amdhsa_kernarg_size 80
  .amdhsa_user_sgpr_count 2
  .amdhsa_user_sgpr_kernarg_segment_ptr 1
  .amdhsa_system_sgpr_workgroup_id_x 1
  .amdhsa_float_denorm_mode_32 3
.end_amdhsa_kernel
"""

def generate(cfg):
    hdr = open("cdna_kernels/" + NAME + ".s.ref").read().split("; Override launch")[0]
    a = A()
    gen_prep(a, cfg)
    gen_main(a, cfg)
    out = hdr
    out += "; @launch kernel=prep_kernel grid=(1024,1,1) block=(256,1,1) lds=0\n"
    out += f"; @launch kernel={NAME}_kernel grid=(256,1,1) block=(256,1,1) lds={cfg.R*16384}\n"
    out += '.amdgcn_target "amdgcn-amd-amdhsa--gfx950"\n.text\n'
    out += a.text()
    out += '.section .rodata,"a"\n'
    out += kd("prep_kernel", 32, 32, 64)
    out += kd(NAME + "_kernel", 256 + 192, 256)
    return out

if __name__ == "__main__":
    cfg = Cfg()
    outp = sys.argv[1]
    for kv in sys.argv[2:]:
        k, v = kv.split("=")
        setattr(cfg, k, eval(v))
    open(outp, "w").write(generate(cfg))
```

```python
import sys, math
NAME = "standalone__kv_cache_quant_int4_int2_kv_with_per_channel_or_per_token_scales__prompt"

class Cfg:
    R = 4
    PD = 2
    UNROLL = 4
    dma_slots = (52, 54, 56, 58)
    bar_slot = 49
    vm_slot = 48
    force_safe = False
    timing = False
    no_dma = False
    no_bar = False
    no_vm = False
    pstamps = False
    dbg = 0
    q_nt = ''
    p_nt = ''
    o_nt = ''
    w_nt = ''

def f32bits(x):
    import struct
    return struct.unpack("<I", struct.pack("<f", x))[0]

class A:
    def __init__(self): self.l = []
    def __call__(self, s): self.l.append("    " + s)
    def lab(self, s): self.l.append(s + ":")
    def raw(self, s): self.l.append(s)
    def text(self): return "\n".join(self.l) + "\n"

def srd(a, d, lo, hi, nbytes):
    a(f"s_mov_b32 s{d}, {lo}")
    a(f"s_and_b32 s{d+1}, {hi}, 0xffff")
    a(f"s_mov_b32 s{d+2}, {nbytes}")
    a(f"s_mov_b32 s{d+3}, 0x00020000")

def unpack(a, lo, hi, src):
    a(f"v_lshlrev_b32 v{lo}, 16, v{src}")
    a(f"v_and_b32 v{hi}, 0xffff0000, v{src}")

def gen_prep(a, cfg):
    C = f32bits(math.log2(math.e) / math.sqrt(128.0))
    a.raw(".globl prep_kernel\n.p2align 8\n.type prep_kernel,@function")
    a.lab("prep_kernel")
    a("s_cmp_ge_u32 s2, 1024")
    a("s_cbranch_scc1 P_end")
    a("s_load_dwordx4 s[20:23], s[0:1], 8")
    a("s_load_dwordx8 s[24:31], s[0:1], 24")
    a("s_load_dwordx2 s[32:33], s[0:1], 72")
    a("v_lshrrev_b32 v1, 6, v0")
    a("v_and_b32 v0, 63, v0")
    a("v_readfirstlane_b32 s16, v1")
    a("v_and_b32 v1, 15, v0")
    a("v_lshrrev_b32 v2, 4, v0")
    a("s_lshr_b32 s17, s2, 8")
    a("s_lshr_b32 s18, s2, 2")
    a("s_and_b32 s18, s18, 63")
    a("s_and_b32 s19, s2, 3")
    a("s_lshl_b32 s34, s19, 2")
    a("s_add_u32 s34, s34, s16")
    a("s_lshl_b32 s35, s17, 11")
    a("s_lshl_b32 s36, s18, 5")
    a("s_add_u32 s35, s35, s36")
    a("s_waitcnt lgkmcnt(0)")
    srd(a, 12, "s32", "s33", 4 << 20)
    a("s_cmp_ge_u32 s19, 2")
    a("s_cbranch_scc1 P_v")
    srd(a, 4, "s20", "s21", 4 << 20)
    srd(a, 8, "s24", "s25", 2048)
    srd(a, 40, "s26", "s27", 2048)
    a("s_lshl_b32 s36, s19, 4")
    a("s_add_u32 s36, s36, s35")
    a("v_add_u32 v3, s36, v1")
    a("v_lshlrev_b32 v3, 9, v3")
    a("s_lshl_b32 s37, s16, 5")
    a("v_lshlrev_b32 v4, 3, v2")
    a("v_add_u32 v4, s37, v4")
    a("v_lshl_add_u32 v3, v4, 2, v3")
    a(f"buffer_load_dwordx4 v[8:11], v3, s[4:7], 0 offen{cfg.p_nt}")
    a(f"buffer_load_dwordx4 v[12:15], v3, s[4:7], 0 offen offset:16{cfg.p_nt}")
    a("s_lshr_b32 s37, s18, 5")
    a("s_lshl_b32 s38, s17, 1")
    a("s_add_u32 s37, s37, s38")
    a("s_lshl_b32 s37, s37, 8")
    a("v_lshlrev_b32 v5, 1, v4")
    a("v_add_u32 v5, s37, v5")
    a("buffer_load_dwordx4 v[16:19], v5, s[8:11], 0 offen")
    a("buffer_load_dwordx4 v[20:23], v5, s[40:43], 0 offen")
    a("s_add_u32 s37, s18, 62")
    a("s_and_b32 s37, s37, 63")
    a("s_lshl_b32 s38, s17, 6")
    a("s_add_u32 s37, s37, s38")
    a("s_lshl_b32 s37, s37, 4")
    a("s_add_u32 s37, s37, s34")
    a("s_lshl_b32 s37, s37, 10")
    a("v_lshlrev_b32 v6, 4, v0")
    a("v_add_u32 v6, s37, v6")
    a(f"s_mov_b32 s39, 0x{C:08x}")
    a("s_waitcnt vmcnt(0)")
    for p in range(4):
        x0, x1 = 8 + 2 * p, 9 + 2 * p
        a(f"v_cvt_f32_i32 v{x0}, v{x0}")
        a(f"v_cvt_f32_i32 v{x1}, v{x1}")
        a(f"v_cvt_pk_bf16_f32 v24, v{x0}, v{x1}")
        unpack(a, x0, x1, 24)
        unpack(a, 25, 26, 20 + p)
        a(f"v_sub_f32 v{x0}, v{x0}, v25")
        a(f"v_sub_f32 v{x1}, v{x1}, v26")
        a(f"v_cvt_pk_bf16_f32 v24, v{x0}, v{x1}")
        unpack(a, x0, x1, 24)
        unpack(a, 25, 26, 16 + p)
        a(f"v_mul_f32 v{x0}, v{x0}, v25")
        a(f"v_mul_f32 v{x1}, v{x1}, v26")
        a(f"v_cvt_pk_bf16_f32 v24, v{x0}, v{x1}")
        unpack(a, x0, x1, 24)
        a(f"v_mul_f32 v{x0}, s39, v{x0}")
        a(f"v_mul_f32 v{x1}, s39, v{x1}")
        a(f"v_cvt_pk_bf16_f32 v{28+p}, v{x0}, v{x1}")
    a(f"buffer_store_dwordx4 v[28:31], v6, s[12:15], 0 offen{cfg.w_nt}")
    a("s_endpgm")
    a.lab("P_v")
    srd(a, 4, "s22", "s23", 4 << 20)
    srd(a, 8, "s28", "s29", 16384)
    srd(a, 40, "s30", "s31", 16384)
    a("s_sub_u32 s36, s34, 8")
    a("s_lshr_b32 s37, s36, 1")
    a("s_lshl_b32 s37, s37, 5")
    a("s_and_b32 s38, s36, 1")
    a("s_lshl_b32 s38, s38, 2")
    a("s_add_u32 s37, s37, s38")
    a("v_lshrrev_b32 v3, 2, v1")
    a("v_lshlrev_b32 v3, 3, v3")
    a("v_and_b32 v4, 3, v1")
    a("v_add3_u32 v3, v3, v4, s37")
    a("v_lshlrev_b32 v4, 2, v2")
    a("v_add_u32 v4, s35, v4")
    a("v_lshlrev_b32 v5, 9, v4")
    a("v_lshl_add_u32 v5, v3, 2, v5")
    a("s_movk_i32 s38, 0x2000")
    for j in range(8):
        so = "0" if j < 4 else "s38"
        a(f"buffer_load_dword v{8+j}, v5, s[4:7], {so} offen offset:{(j&3)*512}{cfg.p_nt}")
    a("v_lshlrev_b32 v4, 1, v4")
    a("buffer_load_dwordx2 v[16:17], v4, s[8:11], 0 offen")
    a("buffer_load_dwordx2 v[18:19], v4, s[8:11], 0 offen offset:32")
    a("buffer_load_dwordx2 v[20:21], v4, s[40:43], 0 offen")
    a("buffer_load_dwordx2 v[22:23], v4, s[40:43], 0 offen offset:32")
    a("s_lshl_b32 s38, s17, 6")
    a("s_add_u32 s37, s18, s38")
    a("s_lshl_b32 s37, s37, 4")
    a("s_add_u32 s37, s37, s34")
    a("s_lshl_b32 s37, s37, 10")
    a("v_lshlrev_b32 v6, 4, v0")
    a("v_add_u32 v6, s37, v6")
    a("s_waitcnt vmcnt(0)")
    for p in range(4):
        x0, x1 = 8 + 2 * p, 9 + 2 * p
        a(f"v_cvt_f32_i32 v{x0}, v{x0}")
        a(f"v_cvt_f32_i32 v{x1}, v{x1}")
        a(f"v_cvt_pk_bf16_f32 v24, v{x0}, v{x1}")
        unpack(a, x0, x1, 24)
        unpack(a, 25, 26, 20 + p)
        a(f"v_sub_f32 v{x0}, v{x0}, v25")
        a(f"v_sub_f32 v{x1}, v{x1}, v26")
        a(f"v_cvt_pk_bf16_f32 v24, v{x0}, v{x1}")
        unpack(a, x0, x1, 24)
        unpack(a, 25, 26, 16 + p)
        a(f"v_mul_f32 v{x0}, v{x0}, v25")
        a(f"v_mul_f32 v{x1}, v{x1}, v26")
        a(f"v_cvt_pk_bf16_f32 v{28+p}, v{x0}, v{x1}")
    a(f"buffer_store_dwordx4 v[28:31], v6, s[12:15], 0 offen{cfg.w_nt}")
    a.lab("P_end")
    a("s_endpgm")

V_LANE16 = 1
V_LANE16H = 2
V_DMA = 3
V_L = 4
V_T = 8
SB = (16, 48)
PB = (80, 96)
V_C = 112
V_O = 128
A_Q = 0
A_K = 64
A_V = 80
NU = 64

def vr(b, n=4): return f"v[{b}:{b+n-1}]"
def ar(b, n=4): return f"a[{b}:{b+n-1}]"
def S(u, tb, qb): return SB[u % 2] + (tb * 4 + qb) * 4
def P(u, qb): return PB[u % 2] + qb * 4
def O(db, qb): return V_O + (db * 4 + qb) * 4
def Q(qb, s): return A_Q + (qb * 4 + s) * 4
MF = "v_mfma_f32_16x16x32_bf16"

class Track:
    def __init__(self): self.q = []
    def issue(self, tag): self.q.append(tag)
    def wait_count(self, tag):
        idx = max(i for i, t in enumerate(self.q) if t == tag)
        return len(self.q) - 1 - idx

def lds_read(a, cfg, lg, kind, unit, i):
    R = cfg.R
    if kind == "K":
        off = ((unit - 2) % R) * 16384 + i * 1024
        dst = A_K + ((unit * 8 + i) % 4) * 4
    else:
        off = (unit % R) * 16384 + 8192 + i * 1024
        dst = A_V + ((unit * 8 + i) % 4) * 4
    va = V_LANE16
    if off >= 65536:
        off -= 65536; va = V_LANE16H
    a(f"ds_read_b128 {ar(dst)}, v{va} offset:{off}")
    lg.issue((kind, unit, i))

def sm_elem(k):
    tb = k // 16; qb = (k // 4) % 4; r = k % 4
    return tb, qb, r

def emit_step(a, cfg, u, lg, vm, czero=False, extra=None):
    R, PD = cfg.R, cfg.PD
    qk = 0 <= u + 1 < NU
    sm = 0 <= u < NU
    smprev = 0 <= u - 1 < NU
    pv = 0 <= u - 1 < NU
    extra = extra or {}
    for slot in range(64):
        i = slot // 8; quad = (slot // 4) % 2; g = slot % 4; qb = g
        n = slot // 4
        if quad == 0:
            if qk:
                tb, s = i // 4, i % 4
                d = S(u + 1, tb, qb)
                c = vr(d) if s else ("0" if czero else vr(V_C + qb * 4))
                a(f"{MF} {vr(d)}, {ar(A_K + (((u+1)*8+i) % 4) * 4)}, {ar(Q(qb, s))}, {c}")
            else:
                a("s_nop 0")
        else:
            if pv:
                d = O(i, qb)
                a(f"{MF} {vr(d)}, {ar(A_V + (((u-1)*8+i) % 4) * 4)}, {vr(P(u-1, qb))}, {vr(d)}")
            else:
                a("s_nop 0")
        if g == 2:
            if quad == 0:
                if pv: a(f"s_waitcnt lgkmcnt({lg.wait_count(('V', u-1, i))})")
            else:
                nu, ni = (u + 1, i + 1) if i < 7 else (u + 2, 0)
                if 0 <= nu < NU: a(f"s_waitcnt lgkmcnt({lg.wait_count(('K', nu, ni))})")
        if slot == cfg.vm_slot and -1 <= u < NU and not (cfg.no_vm and u > 2):
            a(f"s_waitcnt vmcnt({vm.wait_count(('S', u))})")
        if slot == cfg.bar_slot and -1 <= u < NU and not (cfg.no_bar and u > 1):
            a("s_barrier")
        x = u - 2 + R
        if u >= 0 and x < NU:
            if slot == cfg.dma_slots[0] - 8:
                a("s_add_u32 s18, s18, 0x4000")
            if slot == cfg.dma_slots[0] - 7:
                a(f"s_add_u32 m0, s17, {(x % R) * 16384}")
            if slot in cfg.dma_slots:
                k = cfg.dma_slots.index(slot)
                if not cfg.no_dma: a(f"buffer_load_dwordx4 v{V_DMA}, s[8:11], s18 offen offset:{k*1024} lds")
                vm.issue(('S', x))
        for e in extra.get(slot, []): a(e)
        if g == 3:
            if quad == 0:
                nu, ni = (u + 1, i + PD) if i + PD < 8 else (u + 2, i + PD - 8)
                if 0 <= nu < NU: lds_read(a, cfg, lg, "K", nu, ni)
            else:
                nu, ni = (u - 1, i + PD) if i + PD < 8 else (u, i + PD - 8)
                if 0 <= nu < NU: lds_read(a, cfg, lg, "V", nu, ni)
        if g in (0, 2):
            if sm:
                tb, q2, r = sm_elem(2 * n + g // 2)
                a(f"v_exp_f32 v{S(u,tb,q2)+r}, v{S(u,tb,q2)+r}")
        if g in (1, 3):
            if sm:
                tb, q2, r = sm_elem(2 * n + g // 2)
                a(f"v_add_f32 v{V_L+q2}, v{V_L+q2}, v{S(u,tb,q2)+r}")
        if g == 1:
            if n > 0:
                if sm:
                    tb, q2, r = sm_elem(2 * n - 2)
                    a(f"v_cvt_pk_bf16_f32 v{P(u,q2)+tb*2+r//2}, v{S(u,tb,q2)+r}, v{S(u,tb,q2)+r+1}")
            elif smprev:
                tb, q2, r = sm_elem(30)
                a(f"v_cvt_pk_bf16_f32 v{P(u-1,q2)+tb*2+r//2}, v{S(u-1,tb,q2)+r}, v{S(u-1,tb,q2)+r+1}")

def stamp(a, cfg, idx, p=False):
    if cfg.timing and (p == cfg.pstamps):
        a(f"s_memtime s[{60+2*idx}:{61+2*idx}]")
        a("s_waitcnt lgkmcnt(0)")

def xlane(a, regs, tmps, op):
    for sw in ("v_permlane32_swap_b32", "v_permlane16_swap_b32"):
        for r, t in zip(regs, tmps): a(f"v_mov_b32 v{t}, v{r}")
        a("s_nop 1")
        for r, t in zip(regs, tmps): a(f"{sw} v{r}, v{t}")
        a("s_nop 1")
        for r, t in zip(regs, tmps): a(f"{op} v{r}, v{r}, v{t}")

def tile_max(a, u, dst):
    for qb in range(4):
        s0, s1 = S(u, 0, qb), S(u, 1, qb)
        a(f"v_max3_f32 v{dst+qb}, v{s0}, v{s0+1}, v{s0+2}")
        a(f"v_max3_f32 v{dst+qb}, v{dst+qb}, v{s0+3}, v{s1}")
        a(f"v_max3_f32 v{dst+qb}, v{dst+qb}, v{s1+1}, v{s1+2}")
        a(f"v_max_f32 v{dst+qb}, v{dst+qb}, v{s1+3}")

def gen_main(a, cfg):
    R = cfg.R
    K = NAME + "_kernel"
    a.raw(f".globl {K}\n.p2align 8\n.type {K},@function")
    a.lab(K)
    a("s_cmp_ge_u32 s2, 256")
    a("s_cbranch_scc1 M_end")
    a("s_load_dwordx2 s[20:21], s[0:1], 0")
    a("s_load_dwordx2 s[22:23], s[0:1], 56")
    a("s_load_dwordx2 s[24:25], s[0:1], 72")
    if cfg.timing:
        a(f"s_load_dwordx2 s[40:41], s[0:1], {64 if cfg.dbg else 72}")
        a("s_memtime s[44:45]")
        a("s_memrealtime s[46:47]")
    a("v_lshrrev_b32 v4, 6, v0")
    a("v_and_b32 v0, 63, v0")
    a("v_readfirstlane_b32 s16, v4")
    a(f"v_lshlrev_b32 v{V_LANE16}, 4, v0")
    a(f"v_add_u32 v{V_LANE16H}, 0x10000, v{V_LANE16}")
    a("s_and_b32 s26, s2, 7")
    a("s_lshr_b32 s27, s2, 3")
    a("s_lshr_b32 s28, s26, 1")
    a("s_and_b32 s26, s26, 1")
    a("s_lshl_b32 s26, s26, 5")
    a("s_add_u32 s26, s26, s27")
    a("s_lshl_b32 s27, s28, 6")
    a("s_add_u32 s26, s26, s27")
    a("s_lshl_b32 s26, s26, 2")
    a("s_add_u32 s26, s26, s16")
    a("s_lshl_b32 s26, s26, 14")
    a("s_lshl_b32 s17, s16, 12")
    a(f"v_add_u32 v{V_DMA}, s17, v{V_LANE16}")
    a("s_lshl_b32 s29, s16, 11")
    a(f"v_add_u32 v8, s29, v{V_LANE16}")
    a("v_and_b32 v9, 15, v0")
    a("v_lshlrev_b32 v9, 8, v9")
    a("v_lshrrev_b32 v10, 4, v0")
    a("v_lshl_add_u32 v9, v10, 4, v9")
    a("v_add_u32 v10, 0x1000, v9")
    a("v_add_u32 v11, 0x2000, v9")
    a("v_add_u32 v12, 0x3000, v9")
    a("s_lshl_b32 s28, s28, 20")
    a("s_waitcnt lgkmcnt(0)")
    stamp(a, cfg, 0, True)
    a("s_add_u32 s24, s24, s28")
    a("s_addc_u32 s25, s25, 0")
    srd(a, 8, "s24", "s25", 1 << 20)
    a("s_add_u32 s20, s20, s26")
    a("s_addc_u32 s21, s21, 0")
    srd(a, 4, "s20", "s21", 16384)
    a("s_add_u32 s22, s22, s26")
    a("s_addc_u32 s23, s23, 0")
    srd(a, 12, "s22", "s23", 16384)
    lg, vm = Track(), Track()
    a(f"s_add_u32 m0, s29, {(R-2)*16384}")
    a(f"s_mov_b32 s18, {62*16384}")
    for k in range(2):
        a(f"buffer_load_dwordx4 v8, s[8:11], s18 offen offset:{k*1024} lds"); vm.issue(('S', -2))
    for qb in range(4):
        for s in range(4):
            a(f"buffer_load_dwordx4 {ar(Q(qb,s))}, v{9+qb}, s[4:7], 0 offen offset:{s*64}{cfg.q_nt}"); vm.issue(('Q',))
    a(f"s_add_u32 m0, s29, {(R-1)*16384}")
    a(f"s_mov_b32 s18, {63*16384}")
    for k in range(2):
        a(f"buffer_load_dwordx4 v8, s[8:11], s18 offen offset:{k*1024} lds"); vm.issue(('S', -1))
    for x in range(R - 2):
        a(f"s_add_u32 m0, s17, {x*16384}")
        a(f"s_mov_b32 s18, {x*16384}")
        for k in range(4):
            a(f"buffer_load_dwordx4 v{V_DMA}, s[8:11], s18 offen offset:{k*1024} lds"); vm.issue(('S', x))
    stamp(a, cfg, 1, True)
    for r in range(128): a(f"v_mov_b32 v{V_O+r}, 0")
    for r in range(4): a(f"v_mov_b32 v{V_L+r}, 0")
    if cfg.pstamps:
        a(f"s_waitcnt vmcnt({vm.wait_count(('S',-2))})")
        stamp(a, cfg, 2, True)
    a(f"s_waitcnt vmcnt({vm.wait_count(('Q',))})")
    stamp(a, cfg, 3, True)
    a("s_barrier")
    stamp(a, cfg, 0)
    for i in range(cfg.PD): lds_read(a, cfg, lg, "K", 0, i)
    a(f"s_waitcnt lgkmcnt({lg.wait_count(('K', 0, 0))})")
    emit_step(a, cfg, -1, lg, vm, czero=True)
    a("s_nop 7")
    tile_max(a, 0, V_T)
    xlane(a, [V_T + i for i in range(4)], [V_T + 4 + i for i in range(4)], "v_max_f32")
    for qb in range(4):
        for r in range(4): a(f"v_sub_f32 v{V_C+qb*4+r}, 0, v{V_T+qb}")
    for tb in range(2):
        for qb in range(4):
            for r in range(4): a(f"v_sub_f32 v{S(0,tb,qb)+r}, v{S(0,tb,qb)+r}, v{V_T+qb}")
    a("s_nop 1")
    U = cfg.UNROLL
    L0 = 2
    lastfull = NU - R + 1
    nit = (lastfull - (R - 3) - L0 + 1) // U
    nit = (min(lastfull, 62) - L0 + 1) // U
    steps = []
    for u in range(0, NU + 1):
        b = A()
        ex = {}
        if L0 <= u < L0 + nit * U and (u - L0) % U == U - 1:
            ex = {60: ["s_sub_u32 s19, s19, 1"], 61: ["s_cmp_lg_u32 s19, 0"]}
        emit_step(b, cfg, u, lg, vm, extra=ex)
        steps.append(b.l)
    for u in range(L0 + U, L0 + nit * U):
        assert steps[u] == steps[u - U], f"loop body mismatch at step {u}"
    for u in range(0, L0): a.l += steps[u]
    a(f"s_mov_b32 s19, {nit}")
    stamp(a, cfg, 1)
    a.raw(".p2align 6")
    a.lab("M_loop")
    for u in range(L0, L0 + U): a.l += steps[u]
    a("s_cbranch_scc1 M_loop")
    stamp(a, cfg, 2)
    for u in range(L0 + nit * U, NU + 1): a.l += steps[u]
    a("s_nop 7")
    stamp(a, cfg, 3)
    xlane(a, [V_L + i for i in range(4)], [V_T + i for i in range(4)], "v_add_f32")
    a(f"v_max3_f32 v{V_T}, v{V_L}, v{V_L+1}, v{V_L+2}")
    a(f"v_add_f32 v{V_T+1}, v{V_L}, v{V_L+1}")
    a(f"v_add_f32 v{V_T+2}, v{V_L+2}, v{V_L+3}")
    a(f"v_add_f32 v{V_T+1}, v{V_T+1}, v{V_T+2}")
    a(f"v_mov_b32 v{V_T+3}, 0x{f32bits(2.0**26):08x}")
    a(f"v_cmp_nle_f32 vcc, v{V_T+1}, v{V_T+3}")
    if cfg.force_safe:
        a("s_branch M_safe")
    a("s_cbranch_vccnz M_safe")
    a.lab("M_fin")
    for qb in range(4): a(f"v_rcp_f32 v{V_T+qb}, v{V_L+qb}")
    a("s_nop 0")
    for qb in range(4):
        a(f"v_fma_f32 v{V_T+4+qb}, -v{V_L+qb}, v{V_T+qb}, 2.0")
    for qb in range(4):
        a(f"v_mul_f32 v{V_T+qb}, v{V_T+qb}, v{V_T+4+qb}")
    a("v_and_b32 v16, 15, v0")
    a("v_lshlrev_b32 v16, 8, v16")
    a("v_lshrrev_b32 v17, 4, v0")
    a("v_lshl_add_u32 v16, v17, 4, v16")
    a("v_add_u32 v17, 0x1000, v16")
    a("v_add_u32 v18, 0x2000, v16")
    a("v_add_u32 v19, 0x3000, v16")
    k = 0
    for qb in range(4):
        for m in range(4):
            t = 32 + (k % 8) * 4; k += 1
            for h in range(2):
                o = O(2 * m + h, qb)
                for r in range(4): a(f"v_mul_f32 v{o+r}, v{o+r}, v{V_T+qb}")
                a(f"v_cvt_pk_bf16_f32 v{t+2*h}, v{o}, v{o+1}")
                a(f"v_cvt_pk_bf16_f32 v{t+2*h+1}, v{o+2}, v{o+3}")
            a(f"buffer_store_dwordx4 {vr(t)}, v{16+qb}, s[12:15], 0 offen offset:{m*64}{cfg.o_nt}")
    if cfg.timing:
        a("s_waitcnt vmcnt(0)")
        a("s_memtime s[48:49]")
        a("s_memrealtime s[50:51]")
        a("s_waitcnt lgkmcnt(0)")
        if cfg.dbg:
            a(f"s_sub_u32 s40, s40, {cfg.dbg-1}")
            a("s_subb_u32 s41, s41, 0")
            srd(a, 52, "s40", "s41", 64)
        else:
            a("s_add_u32 s40, s40, 0x1000000")
            a("s_addc_u32 s41, s41, 0")
            srd(a, 52, "s40", "s41", 1 << 20)
        a("s_sub_u32 s48, s48, s44")
        a("v_mov_b32 v4, s48")
        a("v_mov_b32 v5, s46")
        a("v_mov_b32 v6, s50")
        a("v_mov_b32 v7, 0")
        a("s_lshl_b32 s3, s2, 2")
        a("s_add_u32 s3, s3, s16")
        a("s_lshl_b32 s3, s3, 5")
        a("v_mov_b32 v8, s3")
        a("buffer_store_dwordx4 v[4:7], v8, s[52:55], 0 offen")
        for i in range(4):
            a(f"s_sub_u32 s{60+2*i}, s{60+2*i}, s44")
            a(f"v_mov_b32 v{10+i}, s{60+2*i}")
        a("s_nop 1")
        a("buffer_store_dwordx4 v[10:13], v8, s[52:55], 0 offen offset:16")
    a.lab("M_end")
    a("s_endpgm")
    a.lab("M_safe")
    VM = V_C
    VA = V_C + 4
    for r in range(128): a(f"v_mov_b32 v{V_O+r}, 0")
    for r in range(4): a(f"v_mov_b32 v{V_L+r}, 0")
    for r in range(4): a(f"v_mov_b32 v{VM+r}, 0xff800000")
    a("s_mov_b32 s19, 0")
    a.lab("M_safe_loop")
    a("s_add_u32 s26, s19, 62")
    a("s_and_b32 s26, s26, 63")
    a("s_lshl_b32 s26, s26, 14")
    a("s_add_u32 s27, s26, 0x1000")
    a("s_lshl_b32 s28, s19, 14")
    a("s_add_u32 s28, s28, 0x2000")
    a("s_add_u32 s29, s28, 0x1000")
    for i in range(8):
        a(f"buffer_load_dwordx4 {ar(128+i*4)}, v{V_LANE16}, s[8:11], s{26+i//4} offen offset:{(i%4)*1024}")
    for i in range(8):
        a(f"buffer_load_dwordx4 {ar(160+i*4)}, v{V_LANE16}, s[8:11], s{28+i//4} offen offset:{(i%4)*1024}")
    a("s_waitcnt vmcnt(0)")
    for i in range(8):
        tb, s = i // 4, i % 4
        for qb in range(4):
            d = S(0, tb, qb)
            a(f"{MF} {vr(d)}, {ar(128+i*4)}, {ar(Q(qb,s))}, {vr(d) if s else '0'}")
    a("s_nop 15")
    tile_max(a, 0, V_T)
    xlane(a, [V_T + i for i in range(4)], [V_T + 4 + i for i in range(4)], "v_max_f32")
    for qb in range(4): a(f"v_max_f32 v{V_T+qb}, v{V_T+qb}, v{VM+qb}")
    for qb in range(4): a(f"v_sub_f32 v{VA+qb}, v{VM+qb}, v{V_T+qb}")
    for qb in range(4): a(f"v_exp_f32 v{VA+qb}, v{VA+qb}")
    for qb in range(4): a(f"v_mov_b32 v{VM+qb}, v{V_T+qb}")
    for qb in range(4): a(f"v_mul_f32 v{V_L+qb}, v{V_L+qb}, v{VA+qb}")
    for db in range(8):
        for qb in range(4):
            for r in range(4): a(f"v_mul_f32 v{O(db,qb)+r}, v{O(db,qb)+r}, v{VA+qb}")
    for k in range(32):
        tb, qb, r = sm_elem(k)
        a(f"v_sub_f32 v{S(0,tb,qb)+r}, v{S(0,tb,qb)+r}, v{VM+qb}")
    for k in range(32):
        tb, qb, r = sm_elem(k)
        a(f"v_exp_f32 v{S(0,tb,qb)+r}, v{S(0,tb,qb)+r}")
    a("s_nop 0")
    for k in range(32):
        tb, qb, r = sm_elem(k)
        a(f"v_add_f32 v{V_L+qb}, v{V_L+qb}, v{S(0,tb,qb)+r}")
    for k in range(0, 32, 2):
        tb, qb, r = sm_elem(k)
        a(f"v_cvt_pk_bf16_f32 v{P(0,qb)+tb*2+r//2}, v{S(0,tb,qb)+r}, v{S(0,tb,qb)+r+1}")
    a("s_nop 1")
    for db in range(8):
        for qb in range(4):
            a(f"{MF} {vr(O(db,qb))}, {ar(160+db*4)}, {vr(P(0,qb))}, {vr(O(db,qb))}")
    a("s_nop 15")
    a("s_add_u32 s19, s19, 1")
    a("s_cmp_lt_u32 s19, 64")
    a("s_cbranch_scc1 M_safe_loop")
    xlane(a, [V_L + i for i in range(4)], [V_T + i for i in range(4)], "v_add_f32")
    a("s_branch M_fin")

def kd(name, vgpr, accum, sgpr=102):
    return f""".p2align 6
.amdhsa_kernel {name}
  .amdhsa_next_free_vgpr {vgpr}
  .amdhsa_next_free_sgpr {sgpr}
  .amdhsa_accum_offset {accum}
  .amdhsa_group_segment_fixed_size 0
  .amdhsa_kernarg_size 80
  .amdhsa_user_sgpr_count 2
  .amdhsa_user_sgpr_kernarg_segment_ptr 1
  .amdhsa_system_sgpr_workgroup_id_x 1
  .amdhsa_float_denorm_mode_32 3
.end_amdhsa_kernel
"""

def generate(cfg):
    hdr = open("cdna_kernels/" + NAME + ".s.ref").read().split("; Override launch")[0]
    a = A()
    gen_prep(a, cfg)
    gen_main(a, cfg)
    out = hdr
    out += "; @launch kernel=prep_kernel grid=(1024,1,1) block=(256,1,1) lds=0\n"
    out += f"; @launch kernel={NAME}_kernel grid=(256,1,1) block=(256,1,1) lds={cfg.R*16384}\n"
    out += '.amdgcn_target "amdgcn-amd-amdhsa--gfx950"\n.text\n'
    out += a.text()
    out += '.section .rodata,"a"\n'
    out += kd("prep_kernel", 32, 32, 64)
    out += kd(NAME + "_kernel", 256 + 192, 256)
    return out

if __name__ == "__main__":
    cfg = Cfg()
    outp = sys.argv[1]
    for kv in sys.argv[2:]:
        k, v = kv.split("=")
        setattr(cfg, k, eval(v))
    open(outp, "w").write(generate(cfg))
```

```python
import sys, math
NAME = "standalone__kv_cache_quant_int4_int2_kv_with_per_channel_or_per_token_scales__prompt"

class Cfg:
    R = 4
    PD = 2
    UNROLL = 4
    dma_slots = (52, 54, 56, 58)
    bar_slot = 49
    vm_slot = 48
    force_safe = False
    timing = False
    no_dma = False
    no_bar = False
    no_vm = False
    pstamps = False
    cpf = False
    qpf = False
    qpf_fl = ''
    xmap = False
    dbg = 0
    q_nt = ''
    p_nt = ''
    o_nt = ''
    w_nt = ''

def f32bits(x):
    import struct
    return struct.unpack("<I", struct.pack("<f", x))[0]

class A:
    def __init__(self): self.l = []
    def __call__(self, s): self.l.append("    " + s)
    def lab(self, s): self.l.append(s + ":")
    def raw(self, s): self.l.append(s)
    def text(self): return "\n".join(self.l) + "\n"

def srd(a, d, lo, hi, nbytes):
    a(f"s_mov_b32 s{d}, {lo}")
    a(f"s_and_b32 s{d+1}, {hi}, 0xffff")
    a(f"s_mov_b32 s{d+2}, {nbytes}")
    a(f"s_mov_b32 s{d+3}, 0x00020000")

def unpack(a, lo, hi, src):
    a(f"v_lshlrev_b32 v{lo}, 16, v{src}")
    a(f"v_and_b32 v{hi}, 0xffff0000, v{src}")

def qprefetch(a, cfg):
    if not cfg.qpf: return
    srd(a, 52, "s48", "s49", 16 << 20)
    for k in range(4):
        a(f"buffer_load_dwordx4 v[{32+4*k}:{35+4*k}], v7, s[52:55], s47 offen offset:{k*1024}{cfg.qpf_fl}")

def gen_prep(a, cfg):
    C = f32bits(math.log2(math.e) / math.sqrt(128.0))
    a.raw(".globl prep_kernel\n.p2align 8\n.type prep_kernel,@function")
    a.lab("prep_kernel")
    a("s_cmp_ge_u32 s2, 1024")
    a("s_cbranch_scc1 P_end")
    a("s_load_dwordx4 s[20:23], s[0:1], 8")
    a("s_load_dwordx8 s[24:31], s[0:1], 24")
    a("s_load_dwordx2 s[32:33], s[0:1], 72")
    a("v_lshrrev_b32 v1, 6, v0")
    a("v_and_b32 v0, 63, v0")
    a("v_readfirstlane_b32 s16, v1")
    a("v_and_b32 v1, 15, v0")
    a("v_lshrrev_b32 v2, 4, v0")
    if cfg.xmap:
        a("s_and_b32 s44, s2, 7")
        a("s_lshr_b32 s45, s2, 3")
        a("s_lshr_b32 s17, s44, 1")
        a("s_and_b32 s46, s44, 1")
        a("s_lshl_b32 s46, s46, 7")
        a("s_add_u32 s46, s46, s45")
        a("s_lshr_b32 s18, s46, 2")
        a("s_and_b32 s19, s46, 3")
        a("s_lshl_b32 s47, s17, 8")
        a("s_add_u32 s47, s47, s46")
    else:
        a("s_lshr_b32 s17, s2, 8")
        a("s_lshr_b32 s18, s2, 2")
        a("s_and_b32 s18, s18, 63")
        a("s_and_b32 s19, s2, 3")
        a("s_mov_b32 s47, s2")
    if cfg.qpf:
        a("s_load_dwordx2 s[48:49], s[0:1], 0")
        a("s_lshl_b32 s47, s47, 2")
        a("s_add_u32 s47, s47, s16")
        a("s_lshl_b32 s47, s47, 12")
        a("v_lshlrev_b32 v7, 4, v0")
    a("s_lshl_b32 s34, s19, 2")
    a("s_add_u32 s34, s34, s16")
    a("s_lshl_b32 s35, s17, 11")
    a("s_lshl_b32 s36, s18, 5")
    a("s_add_u32 s35, s35, s36")
    a("s_waitcnt lgkmcnt(0)")
    srd(a, 12, "s32", "s33", 4 << 20)
    if cfg.cpf:
        a("s_cmp_ge_u32 s2, 16")
        a("s_cbranch_scc1 P_nocpf")
        a("s_getpc_b64 s[56:57]")
        a.lab("P_pc")
        a(f"s_add_u32 s56, s56, {NAME}_kernel - P_pc")
        a("s_addc_u32 s57, s57, 0")
        a("s_and_b32 s57, s57, 0xffff")
        a("s_mov_b32 s58, 32768")
        a("s_mov_b32 s59, 0x00020000")
        a("s_lshl_b32 s60, s16, 13")
        a("s_add_u32 s61, s60, 0x1000")
        a("v_lshlrev_b32 v40, 4, v0")
        for k in range(8):
            a(f"buffer_load_dwordx4 v[44:47], v40, s[56:59], s{60 + k//4} offen offset:{(k%4)*1024}")
        a.lab("P_nocpf")
    a("s_cmp_ge_u32 s19, 2")
    a("s_cbranch_scc1 P_v")
    srd(a, 4, "s20", "s21", 4 << 20)
    srd(a, 8, "s24", "s25", 2048)
    srd(a, 40, "s26", "s27", 2048)
    a("s_lshl_b32 s36, s19, 4")
    a("s_add_u32 s36, s36, s35")
    a("v_add_u32 v3, s36, v1")
    a("v_lshlrev_b32 v3, 9, v3")
    a("s_lshl_b32 s37, s16, 5")
    a("v_lshlrev_b32 v4, 3, v2")
    a("v_add_u32 v4, s37, v4")
    a("v_lshl_add_u32 v3, v4, 2, v3")
    a(f"buffer_load_dwordx4 v[8:11], v3, s[4:7], 0 offen{cfg.p_nt}")
    a(f"buffer_load_dwordx4 v[12:15], v3, s[4:7], 0 offen offset:16{cfg.p_nt}")
    a("s_lshr_b32 s37, s18, 5")
    a("s_lshl_b32 s38, s17, 1")
    a("s_add_u32 s37, s37, s38")
    a("s_lshl_b32 s37, s37, 8")
    a("v_lshlrev_b32 v5, 1, v4")
    a("v_add_u32 v5, s37, v5")
    a("buffer_load_dwordx4 v[16:19], v5, s[8:11], 0 offen")
    a("buffer_load_dwordx4 v[20:23], v5, s[40:43], 0 offen")
    qprefetch(a, cfg)
    a("s_add_u32 s37, s18, 62")
    a("s_and_b32 s37, s37, 63")
    a("s_lshl_b32 s38, s17, 6")
    a("s_add_u32 s37, s37, s38")
    a("s_lshl_b32 s37, s37, 4")
    a("s_add_u32 s37, s37, s34")
    a("s_lshl_b32 s37, s37, 10")
    a("v_lshlrev_b32 v6, 4, v0")
    a("v_add_u32 v6, s37, v6")
    a(f"s_mov_b32 s39, 0x{C:08x}")
    a(f"s_waitcnt vmcnt({4 if cfg.qpf else 0})")
    for p in range(4):
        x0, x1 = 8 + 2 * p, 9 + 2 * p
        a(f"v_cvt_f32_i32 v{x0}, v{x0}")
        a(f"v_cvt_f32_i32 v{x1}, v{x1}")
        a(f"v_cvt_pk_bf16_f32 v24, v{x0}, v{x1}")
        unpack(a, x0, x1, 24)
        unpack(a, 25, 26, 20 + p)
        a(f"v_sub_f32 v{x0}, v{x0}, v25")
        a(f"v_sub_f32 v{x1}, v{x1}, v26")
        a(f"v_cvt_pk_bf16_f32 v24, v{x0}, v{x1}")
        unpack(a, x0, x1, 24)
        unpack(a, 25, 26, 16 + p)
        a(f"v_mul_f32 v{x0}, v{x0}, v25")
        a(f"v_mul_f32 v{x1}, v{x1}, v26")
        a(f"v_cvt_pk_bf16_f32 v24, v{x0}, v{x1}")
        unpack(a, x0, x1, 24)
        a(f"v_mul_f32 v{x0}, s39, v{x0}")
        a(f"v_mul_f32 v{x1}, s39, v{x1}")
        a(f"v_cvt_pk_bf16_f32 v{28+p}, v{x0}, v{x1}")
    a(f"buffer_store_dwordx4 v[28:31], v6, s[12:15], 0 offen{cfg.w_nt}")
    a("s_endpgm")
    a.lab("P_v")
    srd(a, 4, "s22", "s23", 4 << 20)
    srd(a, 8, "s28", "s29", 16384)
    srd(a, 40, "s30", "s31", 16384)
    a("s_sub_u32 s36, s34, 8")
    a("s_lshr_b32 s37, s36, 1")
    a("s_lshl_b32 s37, s37, 5")
    a("s_and_b32 s38, s36, 1")
    a("s_lshl_b32 s38, s38, 2")
    a("s_add_u32 s37, s37, s38")
    a("v_lshrrev_b32 v3, 2, v1")
    a("v_lshlrev_b32 v3, 3, v3")
    a("v_and_b32 v4, 3, v1")
    a("v_add3_u32 v3, v3, v4, s37")
    a("v_lshlrev_b32 v4, 2, v2")
    a("v_add_u32 v4, s35, v4")
    a("v_lshlrev_b32 v5, 9, v4")
    a("v_lshl_add_u32 v5, v3, 2, v5")
    a("s_movk_i32 s38, 0x2000")
    for j in range(8):
        so = "0" if j < 4 else "s38"
        a(f"buffer_load_dword v{8+j}, v5, s[4:7], {so} offen offset:{(j&3)*512}{cfg.p_nt}")
    a("v_lshlrev_b32 v4, 1, v4")
    a("buffer_load_dwordx2 v[16:17], v4, s[8:11], 0 offen")
    a("buffer_load_dwordx2 v[18:19], v4, s[8:11], 0 offen offset:32")
    a("buffer_load_dwordx2 v[20:21], v4, s[40:43], 0 offen")
    a("buffer_load_dwordx2 v[22:23], v4, s[40:43], 0 offen offset:32")
    qprefetch(a, cfg)
    a("s_lshl_b32 s38, s17, 6")
    a("s_add_u32 s37, s18, s38")
    a("s_lshl_b32 s37, s37, 4")
    a("s_add_u32 s37, s37, s34")
    a("s_lshl_b32 s37, s37, 10")
    a("v_lshlrev_b32 v6, 4, v0")
    a("v_add_u32 v6, s37, v6")
    a(f"s_waitcnt vmcnt({4 if cfg.qpf else 0})")
    for p in range(4):
        x0, x1 = 8 + 2 * p, 9 + 2 * p
        a(f"v_cvt_f32_i32 v{x0}, v{x0}")
        a(f"v_cvt_f32_i32 v{x1}, v{x1}")
        a(f"v_cvt_pk_bf16_f32 v24, v{x0}, v{x1}")
        unpack(a, x0, x1, 24)
        unpack(a, 25, 26, 20 + p)
        a(f"v_sub_f32 v{x0}, v{x0}, v25")
        a(f"v_sub_f32 v{x1}, v{x1}, v26")
        a(f"v_cvt_pk_bf16_f32 v24, v{x0}, v{x1}")
        unpack(a, x0, x1, 24)
        unpack(a, 25, 26, 16 + p)
        a(f"v_mul_f32 v{x0}, v{x0}, v25")
        a(f"v_mul_f32 v{x1}, v{x1}, v26")
        a(f"v_cvt_pk_bf16_f32 v{28+p}, v{x0}, v{x1}")
    a(f"buffer_store_dwordx4 v[28:31], v6, s[12:15], 0 offen{cfg.w_nt}")
    a.lab("P_end")
    a("s_endpgm")

V_LANE16 = 1
V_LANE16H = 2
V_DMA = 3
V_L = 4
V_T = 8
SB = (16, 48)
PB = (80, 96)
V_C = 112
V_O = 128
A_Q = 0
A_K = 64
A_V = 80
NU = 64

def vr(b, n=4): return f"v[{b}:{b+n-1}]"
def ar(b, n=4): return f"a[{b}:{b+n-1}]"
def S(u, tb, qb): return SB[u % 2] + (tb * 4 + qb) * 4
def P(u, qb): return PB[u % 2] + qb * 4
def O(db, qb): return V_O + (db * 4 + qb) * 4
def Q(qb, s): return A_Q + (qb * 4 + s) * 4
MF = "v_mfma_f32_16x16x32_bf16"

class Track:
    def __init__(self): self.q = []
    def issue(self, tag): self.q.append(tag)
    def wait_count(self, tag):
        idx = max(i for i, t in enumerate(self.q) if t == tag)
        return len(self.q) - 1 - idx

def lds_read(a, cfg, lg, kind, unit, i):
    R = cfg.R
    if kind == "K":
        off = ((unit - 2) % R) * 16384 + i * 1024
        dst = A_K + ((unit * 8 + i) % 4) * 4
    else:
        off = (unit % R) * 16384 + 8192 + i * 1024
        dst = A_V + ((unit * 8 + i) % 4) * 4
    va = V_LANE16
    if off >= 65536:
        off -= 65536; va = V_LANE16H
    a(f"ds_read_b128 {ar(dst)}, v{va} offset:{off}")
    lg.issue((kind, unit, i))

def sm_elem(k):
    tb = k // 16; qb = (k // 4) % 4; r = k % 4
    return tb, qb, r

def emit_step(a, cfg, u, lg, vm, czero=False, extra=None):
    R, PD = cfg.R, cfg.PD
    qk = 0 <= u + 1 < NU
    sm = 0 <= u < NU
    smprev = 0 <= u - 1 < NU
    pv = 0 <= u - 1 < NU
    extra = extra or {}
    for slot in range(64):
        i = slot // 8; quad = (slot // 4) % 2; g = slot % 4; qb = g
        n = slot // 4
        if quad == 0:
            if qk:
                tb, s = i // 4, i % 4
                d = S(u + 1, tb, qb)
                c = vr(d) if s else ("0" if czero else vr(V_C + qb * 4))
                a(f"{MF} {vr(d)}, {ar(A_K + (((u+1)*8+i) % 4) * 4)}, {ar(Q(qb, s))}, {c}")
            else:
                a("s_nop 0")
        else:
            if pv:
                d = O(i, qb)
                a(f"{MF} {vr(d)}, {ar(A_V + (((u-1)*8+i) % 4) * 4)}, {vr(P(u-1, qb))}, {vr(d)}")
            else:
                a("s_nop 0")
        if g == 2:
            if quad == 0:
                if pv: a(f"s_waitcnt lgkmcnt({lg.wait_count(('V', u-1, i))})")
            else:
                nu, ni = (u + 1, i + 1) if i < 7 else (u + 2, 0)
                if 0 <= nu < NU: a(f"s_waitcnt lgkmcnt({lg.wait_count(('K', nu, ni))})")
        if slot == cfg.vm_slot and -1 <= u < NU and not (cfg.no_vm and u > 2):
            a(f"s_waitcnt vmcnt({vm.wait_count(('S', u))})")
        if slot == cfg.bar_slot and -1 <= u < NU and not (cfg.no_bar and u > 1):
            a("s_barrier")
        x = u - 2 + R
        if u >= 0 and x < NU:
            if slot == cfg.dma_slots[0] - 8:
                a("s_add_u32 s18, s18, 0x4000")
            if slot == cfg.dma_slots[0] - 7:
                a(f"s_add_u32 m0, s17, {(x % R) * 16384}")
            if slot in cfg.dma_slots:
                k = cfg.dma_slots.index(slot)
                if not cfg.no_dma: a(f"buffer_load_dwordx4 v{V_DMA}, s[8:11], s18 offen offset:{k*1024} lds")
                vm.issue(('S', x))
        for e in extra.get(slot, []): a(e)
        if g == 3:
            if quad == 0:
                nu, ni = (u + 1, i + PD) if i + PD < 8 else (u + 2, i + PD - 8)
                if 0 <= nu < NU: lds_read(a, cfg, lg, "K", nu, ni)
            else:
                nu, ni = (u - 1, i + PD) if i + PD < 8 else (u, i + PD - 8)
                if 0 <= nu < NU: lds_read(a, cfg, lg, "V", nu, ni)
        if g in (0, 2):
            if sm:
                tb, q2, r = sm_elem(2 * n + g // 2)
                a(f"v_exp_f32 v{S(u,tb,q2)+r}, v{S(u,tb,q2)+r}")
        if g in (1, 3):
            if sm:
                tb, q2, r = sm_elem(2 * n + g // 2)
                a(f"v_add_f32 v{V_L+q2}, v{V_L+q2}, v{S(u,tb,q2)+r}")
        if g == 1:
            if n > 0:
                if sm:
                    tb, q2, r = sm_elem(2 * n - 2)
                    a(f"v_cvt_pk_bf16_f32 v{P(u,q2)+tb*2+r//2}, v{S(u,tb,q2)+r}, v{S(u,tb,q2)+r+1}")
            elif smprev:
                tb, q2, r = sm_elem(30)
                a(f"v_cvt_pk_bf16_f32 v{P(u-1,q2)+tb*2+r//2}, v{S(u-1,tb,q2)+r}, v{S(u-1,tb,q2)+r+1}")

def stamp(a, cfg, idx, p=False):
    if cfg.timing and (p == cfg.pstamps):
        a(f"s_memtime s[{60+2*idx}:{61+2*idx}]")
        a("s_waitcnt lgkmcnt(0)")

def xlane(a, regs, tmps, op):
    for sw in ("v_permlane32_swap_b32", "v_permlane16_swap_b32"):
        for r, t in zip(regs, tmps): a(f"v_mov_b32 v{t}, v{r}")
        a("s_nop 1")
        for r, t in zip(regs, tmps): a(f"{sw} v{r}, v{t}")
        a("s_nop 1")
        for r, t in zip(regs, tmps): a(f"{op} v{r}, v{r}, v{t}")

def tile_max(a, u, dst):
    for qb in range(4):
        s0, s1 = S(u, 0, qb), S(u, 1, qb)
        a(f"v_max3_f32 v{dst+qb}, v{s0}, v{s0+1}, v{s0+2}")
        a(f"v_max3_f32 v{dst+qb}, v{dst+qb}, v{s0+3}, v{s1}")
        a(f"v_max3_f32 v{dst+qb}, v{dst+qb}, v{s1+1}, v{s1+2}")
        a(f"v_max_f32 v{dst+qb}, v{dst+qb}, v{s1+3}")

def gen_main(a, cfg):
    R = cfg.R
    K = NAME + "_kernel"
    a.raw(f".globl {K}\n.p2align 8\n.type {K},@function")
    a.lab(K)
    a("s_cmp_ge_u32 s2, 256")
    a("s_cbranch_scc1 M_end")
    a("s_load_dwordx2 s[20:21], s[0:1], 0")
    a("s_load_dwordx2 s[22:23], s[0:1], 56")
    a("s_load_dwordx2 s[24:25], s[0:1], 72")
    if cfg.timing:
        a(f"s_load_dwordx2 s[40:41], s[0:1], {64 if cfg.dbg else 72}")
        a("s_memtime s[44:45]")
        a("s_memrealtime s[46:47]")
    a("v_lshrrev_b32 v4, 6, v0")
    a("v_and_b32 v0, 63, v0")
    a("v_readfirstlane_b32 s16, v4")
    a(f"v_lshlrev_b32 v{V_LANE16}, 4, v0")
    a(f"v_add_u32 v{V_LANE16H}, 0x10000, v{V_LANE16}")
    a("s_and_b32 s26, s2, 7")
    a("s_lshr_b32 s27, s2, 3")
    a("s_lshr_b32 s28, s26, 1")
    a("s_and_b32 s26, s26, 1")
    a("s_lshl_b32 s26, s26, 5")
    a("s_add_u32 s26, s26, s27")
    a("s_lshl_b32 s27, s28, 6")
    a("s_add_u32 s26, s26, s27")
    a("s_lshl_b32 s26, s26, 2")
    a("s_add_u32 s26, s26, s16")
    a("s_lshl_b32 s26, s26, 14")
    a("s_lshl_b32 s17, s16, 12")
    a(f"v_add_u32 v{V_DMA}, s17, v{V_LANE16}")
    a("s_lshl_b32 s29, s16, 11")
    a(f"v_add_u32 v8, s29, v{V_LANE16}")
    a("v_and_b32 v9, 15, v0")
    a("v_lshlrev_b32 v9, 8, v9")
    a("v_lshrrev_b32 v10, 4, v0")
    a("v_lshl_add_u32 v9, v10, 4, v9")
    a("v_add_u32 v10, 0x1000, v9")
    a("v_add_u32 v11, 0x2000, v9")
    a("v_add_u32 v12, 0x3000, v9")
    a("s_lshl_b32 s28, s28, 20")
    a("s_waitcnt lgkmcnt(0)")
    stamp(a, cfg, 0, True)
    a("s_add_u32 s24, s24, s28")
    a("s_addc_u32 s25, s25, 0")
    srd(a, 8, "s24", "s25", 1 << 20)
    a("s_add_u32 s20, s20, s26")
    a("s_addc_u32 s21, s21, 0")
    srd(a, 4, "s20", "s21", 16384)
    a("s_add_u32 s22, s22, s26")
    a("s_addc_u32 s23, s23, 0")
    srd(a, 12, "s22", "s23", 16384)
    lg, vm = Track(), Track()
    a(f"s_add_u32 m0, s29, {(R-2)*16384}")
    a(f"s_mov_b32 s18, {62*16384}")
    for k in range(2):
        a(f"buffer_load_dwordx4 v8, s[8:11], s18 offen offset:{k*1024} lds"); vm.issue(('S', -2))
    for qb in range(4):
        for s in range(4):
            a(f"buffer_load_dwordx4 {ar(Q(qb,s))}, v{9+qb}, s[4:7], 0 offen offset:{s*64}{cfg.q_nt}"); vm.issue(('Q',))
    a(f"s_add_u32 m0, s29, {(R-1)*16384}")
    a(f"s_mov_b32 s18, {63*16384}")
    for k in range(2):
        a(f"buffer_load_dwordx4 v8, s[8:11], s18 offen offset:{k*1024} lds"); vm.issue(('S', -1))
    for x in range(R - 2):
        a(f"s_add_u32 m0, s17, {x*16384}")
        a(f"s_mov_b32 s18, {x*16384}")
        for k in range(4):
            a(f"buffer_load_dwordx4 v{V_DMA}, s[8:11], s18 offen offset:{k*1024} lds"); vm.issue(('S', x))
    stamp(a, cfg, 1, True)
    for r in range(128): a(f"v_mov_b32 v{V_O+r}, 0")
    for r in range(4): a(f"v_mov_b32 v{V_L+r}, 0")
    if cfg.pstamps:
        a(f"s_waitcnt vmcnt({vm.wait_count(('S',-2))})")
        stamp(a, cfg, 2, True)
    a(f"s_waitcnt vmcnt({vm.wait_count(('Q',))})")
    stamp(a, cfg, 3, True)
    a("s_barrier")
    stamp(a, cfg, 0)
    for i in range(cfg.PD): lds_read(a, cfg, lg, "K", 0, i)
    a(f"s_waitcnt lgkmcnt({lg.wait_count(('K', 0, 0))})")
    emit_step(a, cfg, -1, lg, vm, czero=True)
    a("s_nop 7")
    tile_max(a, 0, V_T)
    xlane(a, [V_T + i for i in range(4)], [V_T + 4 + i for i in range(4)], "v_max_f32")
    for qb in range(4):
        for r in range(4): a(f"v_sub_f32 v{V_C+qb*4+r}, 0, v{V_T+qb}")
    for tb in range(2):
        for qb in range(4):
            for r in range(4): a(f"v_sub_f32 v{S(0,tb,qb)+r}, v{S(0,tb,qb)+r}, v{V_T+qb}")
    a("s_nop 1")
    U = cfg.UNROLL
    L0 = 2
    lastfull = NU - R + 1
    nit = (lastfull - (R - 3) - L0 + 1) // U
    nit = (min(lastfull, 62) - L0 + 1) // U
    steps = []
    for u in range(0, NU + 1):
        b = A()
        ex = {}
        if L0 <= u < L0 + nit * U and (u - L0) % U == U - 1:
            ex = {60: ["s_sub_u32 s19, s19, 1"], 61: ["s_cmp_lg_u32 s19, 0"]}
        emit_step(b, cfg, u, lg, vm, extra=ex)
        steps.append(b.l)
    for u in range(L0 + U, L0 + nit * U):
        assert steps[u] == steps[u - U], f"loop body mismatch at step {u}"
    for u in range(0, L0): a.l += steps[u]
    a(f"s_mov_b32 s19, {nit}")
    stamp(a, cfg, 1)
    a.raw(".p2align 6")
    a.lab("M_loop")
    for u in range(L0, L0 + U): a.l += steps[u]
    a("s_cbranch_scc1 M_loop")
    stamp(a, cfg, 2)
    for u in range(L0 + nit * U, NU + 1): a.l += steps[u]
    a("s_nop 7")
    stamp(a, cfg, 3)
    xlane(a, [V_L + i for i in range(4)], [V_T + i for i in range(4)], "v_add_f32")
    a(f"v_max3_f32 v{V_T}, v{V_L}, v{V_L+1}, v{V_L+2}")
    a(f"v_add_f32 v{V_T+1}, v{V_L}, v{V_L+1}")
    a(f"v_add_f32 v{V_T+2}, v{V_L+2}, v{V_L+3}")
    a(f"v_add_f32 v{V_T+1}, v{V_T+1}, v{V_T+2}")
    a(f"v_mov_b32 v{V_T+3}, 0x{f32bits(2.0**26):08x}")
    a(f"v_cmp_nle_f32 vcc, v{V_T+1}, v{V_T+3}")
    if cfg.force_safe:
        a("s_branch M_safe")
    a("s_cbranch_vccnz M_safe")
    a.lab("M_fin")
    for qb in range(4): a(f"v_rcp_f32 v{V_T+qb}, v{V_L+qb}")
    a("s_nop 0")
    for qb in range(4):
        a(f"v_fma_f32 v{V_T+4+qb}, -v{V_L+qb}, v{V_T+qb}, 2.0")
    for qb in range(4):
        a(f"v_mul_f32 v{V_T+qb}, v{V_T+qb}, v{V_T+4+qb}")
    a("v_and_b32 v16, 15, v0")
    a("v_lshlrev_b32 v16, 8, v16")
    a("v_lshrrev_b32 v17, 4, v0")
    a("v_lshl_add_u32 v16, v17, 4, v16")
    a("v_add_u32 v17, 0x1000, v16")
    a("v_add_u32 v18, 0x2000, v16")
    a("v_add_u32 v19, 0x3000, v16")
    k = 0
    for qb in range(4):
        for m in range(4):
            t = 32 + (k % 8) * 4; k += 1
            for h in range(2):
                o = O(2 * m + h, qb)
                for r in range(4): a(f"v_mul_f32 v{o+r}, v{o+r}, v{V_T+qb}")
                a(f"v_cvt_pk_bf16_f32 v{t+2*h}, v{o}, v{o+1}")
                a(f"v_cvt_pk_bf16_f32 v{t+2*h+1}, v{o+2}, v{o+3}")
            a(f"buffer_store_dwordx4 {vr(t)}, v{16+qb}, s[12:15], 0 offen offset:{m*64}{cfg.o_nt}")
    if cfg.timing:
        a("s_waitcnt vmcnt(0)")
        a("s_memtime s[48:49]")
        a("s_memrealtime s[50:51]")
        a("s_waitcnt lgkmcnt(0)")
        if cfg.dbg:
            a(f"s_sub_u32 s40, s40, {cfg.dbg-1}")
            a("s_subb_u32 s41, s41, 0")
            srd(a, 52, "s40", "s41", 64)
        else:
            a("s_add_u32 s40, s40, 0x1000000")
            a("s_addc_u32 s41, s41, 0")
            srd(a, 52, "s40", "s41", 1 << 20)
        a("s_sub_u32 s48, s48, s44")
        a("v_mov_b32 v4, s48")
        a("v_mov_b32 v5, s46")
        a("v_mov_b32 v6, s50")
        a("v_mov_b32 v7, 0")
        a("s_lshl_b32 s3, s2, 2")
        a("s_add_u32 s3, s3, s16")
        a("s_lshl_b32 s3, s3, 5")
        a("v_mov_b32 v8, s3")
        a("buffer_store_dwordx4 v[4:7], v8, s[52:55], 0 offen")
        for i in range(4):
            a(f"s_sub_u32 s{60+2*i}, s{60+2*i}, s44")
            a(f"v_mov_b32 v{10+i}, s{60+2*i}")
        a("s_nop 1")
        a("buffer_store_dwordx4 v[10:13], v8, s[52:55], 0 offen offset:16")
    a.lab("M_end")
    a("s_endpgm")
    a.lab("M_safe")
    VM = V_C
    VA = V_C + 4
    for r in range(128): a(f"v_mov_b32 v{V_O+r}, 0")
    for r in range(4): a(f"v_mov_b32 v{V_L+r}, 0")
    for r in range(4): a(f"v_mov_b32 v{VM+r}, 0xff800000")
    a("s_mov_b32 s19, 0")
    a.lab("M_safe_loop")
    a("s_add_u32 s26, s19, 62")
    a("s_and_b32 s26, s26, 63")
    a("s_lshl_b32 s26, s26, 14")
    a("s_add_u32 s27, s26, 0x1000")
    a("s_lshl_b32 s28, s19, 14")
    a("s_add_u32 s28, s28, 0x2000")
    a("s_add_u32 s29, s28, 0x1000")
    for i in range(8):
        a(f"buffer_load_dwordx4 {ar(128+i*4)}, v{V_LANE16}, s[8:11], s{26+i//4} offen offset:{(i%4)*1024}")
    for i in range(8):
        a(f"buffer_load_dwordx4 {ar(160+i*4)}, v{V_LANE16}, s[8:11], s{28+i//4} offen offset:{(i%4)*1024}")
    a("s_waitcnt vmcnt(0)")
    for i in range(8):
        tb, s = i // 4, i % 4
        for qb in range(4):
            d = S(0, tb, qb)
            a(f"{MF} {vr(d)}, {ar(128+i*4)}, {ar(Q(qb,s))}, {vr(d) if s else '0'}")
    a("s_nop 15")
    tile_max(a, 0, V_T)
    xlane(a, [V_T + i for i in range(4)], [V_T + 4 + i for i in range(4)], "v_max_f32")
    for qb in range(4): a(f"v_max_f32 v{V_T+qb}, v{V_T+qb}, v{VM+qb}")
    for qb in range(4): a(f"v_sub_f32 v{VA+qb}, v{VM+qb}, v{V_T+qb}")
    for qb in range(4): a(f"v_exp_f32 v{VA+qb}, v{VA+qb}")
    for qb in range(4): a(f"v_mov_b32 v{VM+qb}, v{V_T+qb}")
    for qb in range(4): a(f"v_mul_f32 v{V_L+qb}, v{V_L+qb}, v{VA+qb}")
    for db in range(8):
        for qb in range(4):
            for r in range(4): a(f"v_mul_f32 v{O(db,qb)+r}, v{O(db,qb)+r}, v{VA+qb}")
    for k in range(32):
        tb, qb, r = sm_elem(k)
        a(f"v_sub_f32 v{S(0,tb,qb)+r}, v{S(0,tb,qb)+r}, v{VM+qb}")
    for k in range(32):
        tb, qb, r = sm_elem(k)
        a(f"v_exp_f32 v{S(0,tb,qb)+r}, v{S(0,tb,qb)+r}")
    a("s_nop 0")
    for k in range(32):
        tb, qb, r = sm_elem(k)
        a(f"v_add_f32 v{V_L+qb}, v{V_L+qb}, v{S(0,tb,qb)+r}")
    for k in range(0, 32, 2):
        tb, qb, r = sm_elem(k)
        a(f"v_cvt_pk_bf16_f32 v{P(0,qb)+tb*2+r//2}, v{S(0,tb,qb)+r}, v{S(0,tb,qb)+r+1}")
    a("s_nop 1")
    for db in range(8):
        for qb in range(4):
            a(f"{MF} {vr(O(db,qb))}, {ar(160+db*4)}, {vr(P(0,qb))}, {vr(O(db,qb))}")
    a("s_nop 15")
    a("s_add_u32 s19, s19, 1")
    a("s_cmp_lt_u32 s19, 64")
    a("s_cbranch_scc1 M_safe_loop")
    xlane(a, [V_L + i for i in range(4)], [V_T + i for i in range(4)], "v_add_f32")
    a("s_branch M_fin")

def kd(name, vgpr, accum, sgpr=102):
    return f""".p2align 6
.amdhsa_kernel {name}
  .amdhsa_next_free_vgpr {vgpr}
  .amdhsa_next_free_sgpr {sgpr}
  .amdhsa_accum_offset {accum}
  .amdhsa_group_segment_fixed_size 0
  .amdhsa_kernarg_size 80
  .amdhsa_user_sgpr_count 2
  .amdhsa_user_sgpr_kernarg_segment_ptr 1
  .amdhsa_system_sgpr_workgroup_id_x 1
  .amdhsa_float_denorm_mode_32 3
.end_amdhsa_kernel
"""

def generate(cfg):
    hdr = open("cdna_kernels/" + NAME + ".s.ref").read().split("; Override launch")[0]
    a = A()
    gen_prep(a, cfg)
    gen_main(a, cfg)
    out = hdr
    out += "; @launch kernel=prep_kernel grid=(1024,1,1) block=(256,1,1) lds=0\n"
    out += f"; @launch kernel={NAME}_kernel grid=(256,1,1) block=(256,1,1) lds={cfg.R*16384}\n"
    out += '.amdgcn_target "amdgcn-amd-amdhsa--gfx950"\n.text\n'
    out += a.text()
    out += '.section .rodata,"a"\n'
    out += kd("prep_kernel", 48, 48, 64)
    out += kd(NAME + "_kernel", 256 + 192, 256)
    return out

if __name__ == "__main__":
    cfg = Cfg()
    outp = sys.argv[1]
    for kv in sys.argv[2:]:
        k, v = kv.split("=")
        setattr(cfg, k, eval(v))
    open(outp, "w").write(generate(cfg))
```

```python
import sys, math, struct
NAME = "standalone__kv_cache_quant_int4_int2_kv_with_per_channel_or_per_token_scales__prompt"

class Cfg:
    R = 8
    NB = 2
    UNROLL = 4
    XS = (3,)
    inv = False
    force_safe = False
    force_fb = False
    timing = False
    pstamps = False
    ld_nt = " nt"
    o_fl = " sc1 nt"
    psleep = 2
    dfl = ''
    abl = ''
    XSW = ((0,), (1,), (2,), (3,))
    VPD = 2
    nit = 16
    nobar = False
    nodma = False
    qs = (1, 1)
    q_nt = ' nt'
    k_nt = ''
    flag = 'byte'
    qsplit = 2
    poll_max = 4000

def f32bits(x): return struct.unpack("<I", struct.pack("<f", x))[0]

class A:
    def __init__(self): self.l = []
    def __call__(self, s): self.l.append("    " + s)
    def lab(self, s): self.l.append(s + ":")
    def raw(self, s): self.l.append(s)
    def text(self): return "\n".join(self.l) + "\n"

def srd(a, d, lo, hi, nbytes):
    a(f"s_mov_b32 s{d}, {lo}")
    a(f"s_and_b32 s{d+1}, {hi}, 0xffff")
    a(f"s_mov_b32 s{d+2}, {nbytes}")
    a(f"s_mov_b32 s{d+3}, 0x00020000")

V_LANE16 = 1; V_LANE16H = 2; V_DMA = 3; V_L = 4; V_T = 8
SB = (16, 48); PB = (80, 96); V_C = 112; V_O = 128
A_Q = 0; A_K = 64; A_V = 96; A_ONE = 112; A_L = 116
A_SAFE = 136
NAGPR = 200
NU = 64
S_Q = 4; S_WS = 8; S_OUT = 12; S_WAVE = 16; S_M0 = 17; S_OFF = 18; S_CNT = 19
S_QK = 20; S_QV = 24; S_KS = 28; S_KZ = 32; S_VS = 36; S_VZ = 40; S_DBG = 44
S_T = 48
S_KVH = 49
S_C = 50
S_MASK = 51
S_TMP = 52
S_ST = 72

def vr(b, n=4): return f"v[{b}:{b+n-1}]"
def ar(b, n=4): return f"a[{b}:{b+n-1}]"
def sr(b, n=4): return f"s[{b}:{b+n-1}]"
def S(u, tb, qb): return SB[u % 2] + (tb * 4 + qb) * 4
def P(u, qb): return PB[u % 2] + qb * 4
def O(db, qb): return V_O + (db * 4 + qb) * 4
def Q(qb, s): return A_Q + (qb * 4 + s) * 4
def KF(tb, s): return A_K + (tb * 4 + s) * 4
def VF(u, i): return A_V + ((u * 8 + i) % 4) * 4
MF = "v_mfma_f32_16x16x32_bf16"

class Track:
    def __init__(self): self.q = []
    def issue(self, tag): self.q.append(tag)
    def has(self, tag): return tag in self.q
    def wait_count(self, tag):
        idx = max(i for i, t in enumerate(self.q) if t == tag)
        return len(self.q) - 1 - idx

PH = [0]
def lds_addr(off):
    hi = (off >> 16) ^ PH[0]
    return ((V_LANE16H if hi else V_LANE16), off & 0xffff)

def k_off(cfg, unit, f): return ((unit - 2) % cfg.R) * 16384 + f * 1024
def v_off(cfg, unit, f): return (unit % cfg.R) * 16384 + 8192 + f * 1024

def read_k(a, cfg, lg, unit, tb, s):
    va, off = lds_addr(k_off(cfg, unit, tb * 4 + s))
    a(f"ds_read_b128 {ar(KF(tb, s))}, v{va} offset:{off}")
    lg.issue(("K", unit, tb, s))
def read_v(a, cfg, lg, unit, i):
    va, off = lds_addr(v_off(cfg, unit, i))
    a(f"ds_read_b128 {ar(VF(unit, i))}, v{va} offset:{off}")
    lg.issue(("V", unit, i))

def sm_elem(k): return k // 16, (k // 4) % 4, k % 4

def stamp(a, cfg, idx, p=False):
    if cfg.timing and (p == cfg.pstamps):
        a(f"s_memtime {sr(S_ST+4+2*idx,2)}")
        a("s_waitcnt lgkmcnt(0)")

def dma_setup(x, cfg):
    return [f"s_add_u32 s{S_OFF}, s{S_OFF}, 0x4000", f"s_and_b32 s{S_OFF}, s{S_OFF}, 0xfffff",
            f"s_xor_b32 m0, s{S_M0}, {((x % cfg.R) * 16384) ^ (PH[0] << 16)}"]
DFL = ['']
def dma_piece(k): return f"buffer_load_dwordx4 v{V_DMA}, {sr(S_WS)}, s{S_OFF} offen offset:{k*1024}{DFL[0]} lds"

def emit_step(a, cfg, u, lg, vm, czero=False, ozero=False, dma=None, extra=None, bar=None, kmax=NU, XS=(3,), dma_next=None):
    qk = 0 <= u + 1 < NU; sm = 0 <= u < NU; pv = 0 <= u - 1 < NU
    extra = extra or {}
    dma = dma or []
    def noadd(n): return sm_elem(2 * n)[1] in XS
    solo = [4 * n + 3 for n in range(16) if noadd(n)]
    BAR = 24
    place = {}
    assert len(dma) <= 1
    if dma:
        slots = solo[:4] if (sm and len(solo) >= 4) else [28, 32, 36, 40]
        for k, sl in enumerate(slots): place[sl] = [("dma", dma[0], k)]
    setup = {}
    early = bool(XS) and solo[0] < 8
    if early:
        if dma_next is not None:
            for t_, sl in zip(dma_setup(dma_next, cfg), (40, 41, 44)): setup[sl] = t_
    elif dma:
        for t_, sl in zip(dma_setup(dma[0], cfg), (0, 1, 4)): setup[sl] = t_
    for slot in range(64):
        i = slot // 8; quad = (slot // 4) % 2; g = slot % 4; n = slot // 4
        if slot == BAR:
            for qb in XS:
                if pv:
                    c = "0" if ozero else ar(A_L + qb * 4)
                    a(f"{MF} {ar(A_L + qb * 4)}, {ar(A_ONE)}, {vr(P(u-1, qb))}, {c}")
            if bar and not cfg.nobar:
                a("s_barrier")
        if quad == 0:
            if qk:
                tb, qb, s = i // 4, i % 4, g
                d = S(u + 1, tb, qb)
                c = vr(d) if s else ("0" if czero else vr(V_C + qb * 4))
                a(f"{MF} {vr(d)}, {ar(KF(tb, s))}, {ar(Q(qb, s))}, {c}")
            else: a("s_nop 0")
        else:
            if pv:
                d = O(i, g)
                a(f"{MF} {vr(d)}, {ar(VF(u-1, i))}, {vr(P(u-1, g))}, {'0' if ozero else vr(d)}")
            else: a("s_nop 0")
        if g == 2:
            if quad == 0:
                if pv: a(f"s_waitcnt lgkmcnt({lg.wait_count(('V', u-1, i))})")
            elif i % 4 == 3:
                nu, ntb = (u + 1, 1) if i == 3 else (u + 2, 0)
                if 0 <= nu < kmax: a(f"s_waitcnt lgkmcnt({lg.wait_count(('K', nu, ntb, 3))})")
        if slot == BAR - 3 and bar:
            cnts = [vm.wait_count(('S', x)) for x in bar if vm.has(('S', x))]
            if cnts: a(f"s_waitcnt vmcnt({min(cnts)})")
        if slot in setup: a(setup[slot])
        for e in extra.get(slot, []): a(e)
        for it in place.get(slot, []):
            if not cfg.nodma: a(dma_piece(it[2]))
            vm.issue(('S', it[1]))
        dslot = 1 if (noadd(n) and sm) else 3
        if g == dslot:
            if quad == 0:
                j = (i + 1) % 4
                if i < 3: nu, ntb = u + 1, 1
                elif i < 7: nu, ntb = u + 2, 0
                else: nu, ntb = u + 2, 1
                if 0 <= nu < kmax: read_k(a, cfg, lg, nu, ntb, j)
            else:
                nu, ni = (u - 1, i + cfg.VPD) if i + cfg.VPD < 8 else (u, i + cfg.VPD - 8)
                if 0 <= nu < NU: read_v(a, cfg, lg, nu, ni)
        if g in (0, 2) and sm:
            tb, q2, r = sm_elem(2 * n + g // 2)
            a(f"v_exp_f32 v{S(u,tb,q2)+r}, v{S(u,tb,q2)+r}")
        if g in (1, 3) and sm and not noadd(n):
            tb, q2, r = sm_elem(2 * n + g // 2)
            a(f"v_add_f32 v{V_L+q2}, v{V_L+q2}, v{S(u,tb,q2)+r}")
        if g == 1:
            if n > 0:
                if sm:
                    tb, q2, r = sm_elem(2 * n - 2)
                    a(f"v_cvt_pk_bf16_f32 v{P(u,q2)+tb*2+r//2}, v{S(u,tb,q2)+r}, v{S(u,tb,q2)+r+1}")
            elif pv:
                tb, q2, r = sm_elem(30)
                a(f"v_cvt_pk_bf16_f32 v{P(u-1,q2)+tb*2+r//2}, v{S(u-1,tb,q2)+r}, v{S(u-1,tb,q2)+r+1}")

def xlane(a, regs, tmps, op):
    for sw in ("v_permlane32_swap_b32", "v_permlane16_swap_b32"):
        for r, t in zip(regs, tmps): a(f"v_mov_b32 v{t}, v{r}")
        a("s_nop 1")
        for r, t in zip(regs, tmps): a(f"{sw} v{r}, v{t}")
        a("s_nop 1")
        for r, t in zip(regs, tmps): a(f"{op} v{r}, v{r}, v{t}")

def tile_max(a, u, dst):
    for qb in range(4):
        s0, s1 = S(u, 0, qb), S(u, 1, qb)
        a(f"v_max3_f32 v{dst+qb}, v{s0}, v{s0+1}, v{s0+2}")
        a(f"v_max3_f32 v{dst+qb}, v{dst+qb}, v{s0+3}, v{s1}")
        a(f"v_max3_f32 v{dst+qb}, v{dst+qb}, v{s1+1}, v{s1+2}")
        a(f"v_max_f32 v{dst+qb}, v{dst+qb}, v{s1+3}")

def unpack(a, lo, hi, src):
    a(f"v_lshlrev_b32 v{lo}, 16, v{src}")
    a(f"v_and_b32 v{hi}, s{S_MASK}, v{src}")

def deq_pair(a, x0, x1, z0, z1, s0, s1, t, out, kscale):
    a(f"v_cvt_f32_i32 v{x0}, v{x0}")
    a(f"v_cvt_f32_i32 v{x1}, v{x1}")
    a(f"v_cvt_pk_bf16_f32 v{t}, v{x0}, v{x1}")
    unpack(a, x0, x1, t)
    a(f"v_sub_f32 v{x0}, v{x0}, v{z0}")
    a(f"v_sub_f32 v{x1}, v{x1}, v{z1}")
    a(f"v_cvt_pk_bf16_f32 v{t}, v{x0}, v{x1}")
    unpack(a, x0, x1, t)
    a(f"v_mul_f32 v{x0}, v{x0}, v{s0}")
    a(f"v_mul_f32 v{x1}, v{x1}, v{s1}")
    if kscale:
        a(f"v_cvt_pk_bf16_f32 v{t}, v{x0}, v{x1}")
        unpack(a, x0, x1, t)
        a(f"v_mul_f32 v{x0}, s{S_C}, v{x0}")
        a(f"v_mul_f32 v{x1}, s{S_C}, v{x1}")
    a(f"v_cvt_pk_bf16_f32 v{out}, v{x0}, v{x1}")

def load_k(a, cfg, vm, tag, vK, vKS, sabs, dst, dsz, t0):
    a(f"s_lshl_b32 s{t0}, s{sabs}, 14")
    a(f"s_add_u32 s{t0+1}, s{t0}, 0x2000")
    a(f"s_lshr_b32 s{t0+2}, s{sabs}, 5")
    a(f"s_lshl_b32 s{t0+2}, s{t0+2}, 8")
    for tb in range(2):
        for h in range(2):
            a(f"buffer_load_dwordx4 {vr(dst + tb*8 + h*4)}, v{vK}, {sr(S_QK)}, s{t0+tb} offen offset:{h*16}{cfg.k_nt}"); vm.issue(tag)
    a(f"buffer_load_dwordx4 {vr(dsz)}, v{vKS}, {sr(S_KS)}, s{t0+2} offen"); vm.issue(tag)
    a(f"buffer_load_dwordx4 {vr(dsz+4)}, v{vKS}, {sr(S_KZ)}, s{t0+2} offen"); vm.issue(tag)

def load_v(a, cfg, vm, tag, vV, vVS, sabs, dst, dsz, t0):
    a(f"s_lshl_b32 s{t0}, s{sabs}, 14")
    a(f"s_add_u32 s{t0+1}, s{t0}, 0x2000")
    a(f"s_lshl_b32 s{t0+2}, s{sabs}, 6")
    for j in range(8):
        a(f"buffer_load_dwordx2 {vr(dst + 2*j, 2)}, v{vV}, {sr(S_QV)}, s{t0 + j//4} offen offset:{(j%4)*512}{cfg.ld_nt}"); vm.issue(tag)
    if dsz is None: return
    for h in range(2):
        a(f"buffer_load_dwordx2 {vr(dsz + 2*h, 2)}, v{vVS}, {sr(S_VS)}, s{t0+2} offen offset:{h*32}"); vm.issue(tag)
    for h in range(2):
        a(f"buffer_load_dwordx2 {vr(dsz + 4 + 2*h, 2)}, v{vVS}, {sr(S_VZ)}, s{t0+2} offen offset:{h*32}"); vm.issue(tag)

def deq_k(a, src, sz, w, out):
    for p in range(4):
        unpack(a, w + 2*p, w + 2*p + 1, sz + p)
        unpack(a, w + 8 + 2*p, w + 9 + 2*p, sz + 4 + p)
    for tb in range(2):
        for p in range(4):
            x = src + tb * 8 + 2 * p
            deq_pair(a, x, x + 1, w + 8 + 2*p, w + 9 + 2*p, w + 2*p, w + 2*p + 1, w + 16, out + tb * 4 + p, True)

def deq_v(a, src, sz, w, out, unp=True):
    for p in (range(4) if unp else []):
        unpack(a, w + 2*p, w + 2*p + 1, sz + p)
        unpack(a, w + 8 + 2*p, w + 9 + 2*p, sz + 4 + p)
    for par in range(2):
        for jp in range(4):
            x0 = src + (2 * jp) * 2 + par; x1 = src + (2 * jp + 1) * 2 + par
            deq_pair(a, x0, x1, w + 8 + 2*jp, w + 9 + 2*jp, w + 2*jp, w + 2*jp + 1, w + 16, out + par * 4 + jp, False)

def lane_addrs(a, swave, vK, vKS, vV, vVS, ti, tg, t0):
    a(f"s_lshl_b32 s{t0}, s{swave}, 7")
    a(f"v_lshlrev_b32 v{vK}, 9, v{ti}")
    a(f"v_lshl_add_u32 v{vK}, v{tg}, 5, v{vK}")
    a(f"v_add_u32 v{vK}, s{t0}, v{vK}")
    a(f"s_lshl_b32 s{t0+1}, s{swave}, 6")
    a(f"v_lshlrev_b32 v{vKS}, 4, v{tg}")
    a(f"v_add_u32 v{vKS}, s{t0+1}, v{vKS}")
    a(f"v_lshlrev_b32 v{vV}, 11, v{tg}")
    a(f"v_lshl_add_u32 v{vV}, v{ti}, 3, v{vV}")
    a(f"v_add_u32 v{vV}, s{t0}, v{vV}")
    a(f"v_lshlrev_b32 v{vVS}, 3, v{tg}")

def store_unit(a, vm, sabs, swave, kout, vout, t0):
    a(f"s_add_u32 s{t0}, s{sabs}, 62")
    a(f"s_and_b32 s{t0}, s{t0}, 63")
    a(f"s_lshl_b32 s{t0}, s{t0}, 14")
    a(f"s_lshl_b32 s{t0+1}, s{swave}, 10")
    a(f"s_add_u32 s{t0}, s{t0}, s{t0+1}")
    a(f"s_add_u32 s{t0+2}, s{t0}, 0x1000")
    a(f"s_lshl_b32 s{t0+3}, s{sabs}, 14")
    a(f"s_add_u32 s{t0+3}, s{t0+3}, 0x2000")
    a(f"s_add_u32 s{t0+3}, s{t0+3}, s{t0+1}")
    a(f"s_add_u32 s{t0+3}, s{t0+3}, s{t0+1}")
    if kout is not None:
        a(f"buffer_store_dwordx4 {vr(kout)}, v{V_LANE16}, {sr(S_WS)}, s{t0} offen sc1"); vm.issue(('ST',))
        a(f"buffer_store_dwordx4 {vr(kout+4)}, v{V_LANE16}, {sr(S_WS)}, s{t0+2} offen sc1"); vm.issue(('ST',))
    if vout is not None:
        a(f"buffer_store_dwordx4 {vr(vout)}, v{V_LANE16}, {sr(S_WS)}, s{t0+3} offen sc1"); vm.issue(('ST',))
        a(f"buffer_store_dwordx4 {vr(vout+4)}, v{V_LANE16}, {sr(S_WS)}, s{t0+3} offen offset:1024 sc1"); vm.issue(('ST',))

def gen_main(a, cfg):
    R, NB = cfg.R, cfg.NB
    DFL[0] = cfg.dfl
    assert R == 8 and NB == 2 and cfg.UNROLL == 4
    K = NAME + "_kernel"
    C = f32bits(math.log2(math.e) / math.sqrt(128.0))
    T = S_TMP
    a.raw(f".globl {K}\n.p2align 8\n.type {K},@function")
    a.lab(K)
    a("s_cmp_ge_u32 s2, 256")
    a("s_cbranch_scc1 M_end")
    a("s_load_dwordx16 s[84:99], s[0:1], 0")
    a("s_load_dwordx4 s[68:71], s[0:1], 64")
    if cfg.timing:
        a(f"s_memtime {sr(S_ST,2)}")
        a(f"s_memrealtime {sr(S_ST+2,2)}")
    a("v_lshrrev_b32 v4, 6, v0")
    a("v_and_b32 v0, 63, v0")
    a(f"v_readfirstlane_b32 s{S_WAVE}, v4")
    a(f"v_lshlrev_b32 v{V_LANE16}, 4, v0")
    a(f"v_add_u32 v{V_LANE16H}, 0x10000, v{V_LANE16}")
    a("v_and_b32 v8, 15, v0")
    a("v_lshrrev_b32 v9, 4, v0")
    a(f"s_and_b32 s{T}, s2, 7")
    a(f"s_lshr_b32 s{T+1}, s2, 3")
    a(f"s_lshr_b32 s{S_KVH}, s{T}, 1")
    a(f"s_and_b32 s{T}, s{T}, 1")
    a(f"s_lshl_b32 s{T}, s{T}, 5")
    a(f"s_add_u32 s{S_T}, s{T}, s{T+1}")
    a(f"s_lshl_b32 s{T+2}, s{S_KVH}, 6")
    a(f"s_add_u32 s{T+2}, s{T+2}, s{S_T}")
    a(f"s_lshl_b32 s{T+7}, s{T+2}, 16")
    a(f"s_lshl_b32 s{T+3}, s{S_WAVE}, 14")
    a(f"s_add_u32 s{T+3}, s{T+3}, s{T+7}")
    a(f"s_lshl_b32 s{S_M0}, s{S_WAVE}, 12")
    a(f"v_add_u32 v{V_DMA}, s{S_M0}, v{V_LANE16}")
    a(f"s_lshl_b32 s{T+4}, s{S_KVH}, 20")
    a(f"s_lshl_b32 s{T+5}, s{S_KVH}, 9")
    a(f"s_lshl_b32 s{T+6}, s{S_KVH}, 12")
    def mk(d, lo, off, n):
        a(f"s_add_u32 s{d}, s{lo}, s{off}")
        a(f"s_addc_u32 s{d+1}, s{lo+1}, 0")
        a(f"s_and_b32 s{d+1}, s{d+1}, 0xffff")
        a(f"s_mov_b32 s{d+2}, {n}")
        a(f"s_mov_b32 s{d+3}, 0x00020000")
    def init_acc():
        for r in range(128): a(f"v_mov_b32 v{V_O+r}, 0")
        for r in range(4): a(f"v_mov_b32 v{V_L+r}, 0")
        for r in range(16): a(f"v_accvgpr_write_b32 a{A_L+r}, 0")
        a("v_mov_b32 v10, 0x3f803f80")
        for r in range(4): a(f"v_accvgpr_write_b32 a{A_ONE+r}, v10")
    lg, vm = Track(), Track()
    lane_addrs(a, S_WAVE, 10, 11, 12, 13, 8, 9, T + 12)
    for k in range(4):
        a(f"v_add_u32 v14, {4*k}, v9")
        a("v_xor_b32 v14, v14, v8")
        a("v_lshlrev_b32 v14, 4, v14")
        a(f"v_lshl_add_u32 v{84+k}, v9, 8, v14")
    a(f"s_lshl_b32 s{T+8}, s{S_WAVE}, 14")
    a(f"s_and_b32 s{T+9}, s{S_WAVE}, 2")
    a(f"s_lshl_b32 s{T+9}, s{T+9}, 14")
    a(f"s_add_u32 s{T+8}, s{T+8}, s{T+9}")
    a(f"s_add_u32 s{T+8}, s{T+8}, 0x10000")
    a(f"s_add_u32 s{T+10}, s{S_T}, 1")
    a(f"s_and_b32 s{T+10}, s{T+10}, 63")
    a(f"s_add_u32 s{T+11}, s{S_T}, 2")
    a(f"s_and_b32 s{T+11}, s{T+11}, 63")
    a(f"s_mov_b32 s{S_C}, 0x{C:08x}")
    a(f"s_mov_b32 s{S_MASK}, 0xffff0000")
    a("s_waitcnt lgkmcnt(0)")
    mk(S_QK, 86, T + 4, 1 << 20)
    mk(S_KS, 90, T + 5, 512)
    mk(S_KZ, 92, T + 5, 512)
    KI = (16, 128, 152); KSZ = (32, 144, 168); VI = 40; VSZ = 56; W = 64; OUTS = (96, 104, 112, 120)
    load_k(a, cfg, vm, ('K', 0), 10, 11, S_T, KI[0], KSZ[0], T + 12)
    mk(S_QV, 88, T + 4, 1 << 20)
    mk(S_VS, 94, T + 6, 4096)
    mk(S_VZ, 96, T + 6, 4096)
    load_v(a, cfg, vm, ('V', 0), 12, 13, S_T, VI, VSZ, T + 12)
    load_k(a, cfg, vm, ('K', 1), 10, 11, T + 10, KI[1], KSZ[1], T + 12)
    load_k(a, cfg, vm, ('K', 2), 10, 11, T + 11, KI[2], KSZ[2], T + 12)
    mk(S_Q, 84, T + 3, 16384)
    def qgroup(j):
        a(f"s_add_u32 m0, s{T+8}, {j*4096}")
        a(f"s_movk_i32 s{T+9}, {j*4096}")
        for k in range(4):
            a(f"buffer_load_dwordx4 v{84+k}, {sr(S_Q)}, s{T+9} offen offset:{k*1024}{cfg.q_nt} lds"); vm.issue(('Q',))
    qa, qb_ = cfg.qs
    for j in range(qa): qgroup(j)
    mk(S_OUT, 98, T + 3, 16384)
    mk(S_WS, 70, T + 4, 1 << 20)
    srd(a, S_DBG, "s68", "s69", 256)
    stamp(a, cfg, 0, True)
    a(f"s_lshl_b32 s{T+7}, s{S_WAVE}, 10")
    a(f"v_add_u32 v7, s{T+7}, v{V_LANE16H}")
    a(f"v_add_u32 v6, s{T+7}, v{V_LANE16}")
    a(f"v_add_u32 v5, s{T+7}, v6")
    def vmw(tag): a(f"s_waitcnt vmcnt({min(63, vm.wait_count(tag))})")
    def wrk(unit, out):
        for h in range(2):
            off = k_off(cfg, unit, h * 4)
            a(f"ds_write_b128 v{7 if off >= 65536 else 6}, {vr(out + 4*h)} offset:{off & 0xffff}")
    vmw(('K', 0)); deq_k(a, KI[0], KSZ[0], W, OUTS[0])
    store_unit(a, vm, S_T, S_WAVE, OUTS[0], None, T + 12)
    wrk(0, OUTS[0])
    vmw(('V', 0)); deq_v(a, VI, VSZ, W, OUTS[1])
    store_unit(a, vm, S_T, S_WAVE, None, OUTS[1], T + 12)
    for h in range(2): a(f"ds_write_b128 v5, {vr(OUTS[1] + 4*h)} offset:{v_off(cfg, 0, h)}")
    for j in range(qa, qa + qb_): qgroup(j)
    stamp(a, cfg, 1, True)
    deq_k(a, KI[1], KSZ[1], W, OUTS[2]) if False else None
    vmw(('K', 1)); deq_k(a, KI[1], KSZ[1], W, OUTS[2]); wrk(1, OUTS[2])
    a(f"s_lshl_b32 s{T}, s{S_KVH}, 6")
    a("v_mov_b32 v10, 1")
    a("v_mov_b32 v11, 0")
    a(f"s_waitcnt vmcnt({vm.wait_count(('ST',))})")
    a("s_barrier")
    stamp(a, cfg, 2, True)
    a(f"s_cmp_lg_u32 s{S_WAVE}, 0")
    a("s_cbranch_scc1 M_noflag")
    if not cfg.force_fb:
        a("s_mov_b64 exec, 1")
        a(f"buffer_atomic_add v10, v11, {sr(S_DBG)}, s{T} offen sc1")
        a("s_mov_b64 exec, -1")
    a.lab("M_noflag")
    for j in range(qa + qb_, 4): qgroup(j)
    deq_k(a, KI[2], KSZ[2], W, OUTS[3]); wrk(2, OUTS[3])
    for s_ in range(4):
        a(f"v_add_u32 v10, {4*s_}, v9")
        a("v_xor_b32 v10, v10, v8")
        a("v_lshlrev_b32 v10, 4, v10")
        a(f"v_lshl_add_u32 v10, v8, 8, v10")
        a(f"v_add_u32 v{12+s_}, s{T+8}, v10")
    init_acc()
    a(f"s_lshl_b32 s{S_OFF}, s{S_T}, 14")
    a(f"s_cmp_lg_u32 s{S_WAVE}, 0")
    a("s_cbranch_scc1 M_ready")
    a(f"s_mov_b32 s{S_CNT}, {cfg.poll_max}")
    a.lab("M_poll")
    a(f"buffer_load_dword v{V_T}, off, {sr(S_DBG)}, s{T} sc1")
    a("s_waitcnt vmcnt(0)")
    a(f"v_cmp_eq_u32 vcc, 64, v{V_T}")
    a("s_cmp_eq_u64 vcc, exec")
    a("s_cbranch_scc1 M_ready")
    a(f"s_sub_u32 s{S_CNT}, s{S_CNT}, 1")
    a(f"s_cmp_eq_u32 s{S_CNT}, 0")
    a("s_cbranch_scc1 M_fallback")
    if cfg.psleep: a(f"s_sleep {cfg.psleep}")
    a("s_branch M_poll")
    a.lab("M_ready")
    a("s_waitcnt vmcnt(0) lgkmcnt(0)")
    stamp(a, cfg, 3, True)
    a("s_barrier")
    stamp(a, cfg, 0)
    vm.q = []
    def dma_now(x):
        for t_ in dma_setup(x, cfg): a(t_)
        a("s_nop 0")
        for k in range(4):
            a(dma_piece(k)); vm.issue(('S', x))
    dma_now(1)
    for s_ in range(4): read_k(a, cfg, lg, 0, 0, s_)
    for qb in range(4):
        for s_ in range(4):
            a(f"ds_read_b128 {ar(Q(qb, s_))}, v{12+s_} offset:{qb*4096}"); lg.issue(('Q', qb))
        if qb == 1:
            dma_now(2)
            a("s_waitcnt lgkmcnt(2)")
    dma_now(3)
    for tb in range(2):
        for qb in range(4):
            if tb == 0: a(f"s_waitcnt lgkmcnt({lg.wait_count(('Q', qb))})")
            if tb == 1 and qb == 0: a(f"s_waitcnt lgkmcnt({lg.wait_count(('K', 0, 1, 3))})")
            for s_ in range(4):
                d = S(0, tb, qb)
                a(f"{MF} {vr(d)}, {ar(KF(tb, s_))}, {ar(Q(qb, s_))}, {vr(d) if s_ else '0'}")
                if tb == 0 and qb == 1: read_k(a, cfg, lg, 0, 1, s_)
                if tb == 1 and qb == 1: read_k(a, cfg, lg, 1, 0, s_)
    read_k(a, cfg, lg, 1, 1, 0)
    a("s_barrier")
    a("s_nop 7")
    tile_max(a, 0, V_T)
    xlane(a, [V_T + i for i in range(4)], [V_T + 4 + i for i in range(4)], "v_max_f32")
    for qb in range(4):
        for r in range(4): a(f"v_sub_f32 v{V_C+qb*4+r}, 0, v{V_T+qb}")
    for tb in range(2):
        for qb in range(4):
            for r in range(4): a(f"v_sub_f32 v{S(0,tb,qb)+r}, v{S(0,tb,qb)+r}, v{V_T+qb}")
    a(f"s_mov_b32 s{S_CNT}, {cfg.nit}")
    a(f"s_waitcnt lgkmcnt({lg.wait_count(('K', 1, 0, 3))})")
    stamp(a, cfg, 1)
    def dma_for(u): return [u + 4] if u <= 62 else []
    def bar_for(u): return [u, u + 1] if (u % 2 == 1 and u < NU) else None
    import copy
    variants = cfg.XSW
    nv = len(variants)
    if nv > 1:
        for w in range(1, nv):
            a(f"s_cmp_eq_u32 s{S_WAVE}, {w}")
            a(f"s_cbranch_scc1 M_var{w}")
    for w, XS in enumerate(variants):
        lgw, vmw_ = copy.deepcopy(lg), copy.deepcopy(vm)
        a.lab(f"M_var{w}")
        PH[0] = 0
        if XS and XS[0] == 0:
            for t_ in dma_setup(4, cfg): a(t_)
        steps = {}
        for u in range(0, NU + 1):
            PH[0] = ((u - 3) // 4 + 1) % 2 if u >= 1 else 0
            b = A(); ex = {}
            if 1 <= u <= 62 and u % 4 == 2:
                ex = {56: [f"s_xor_b32 s{S_M0}, s{S_M0}, 0x10000"], 60: [f"s_sub_u32 s{S_CNT}, s{S_CNT}, 1"], 62: [f"s_cmp_lg_u32 s{S_CNT}, 0"]}
            if u == NU: ex = {0: ["s_waitcnt vmcnt(0)"]}
            emit_step(b, cfg, u, lgw, vmw_, dma=dma_for(u), bar=bar_for(u), extra=ex, kmax=(NU + 1 if u <= 62 else NU), XS=XS,
                      dma_next=(u + 5 if u <= 62 else None))
            if 1 <= u <= 62 and u % 4 == 2: b(f"v_swap_b32 v{V_LANE16}, v{V_LANE16H}")
            steps[u] = b.l
        PH[0] = 0
        for u in range(5, 63): assert steps[u] == steps[u - 4], u
        for u in range(1, 5):
            def keep(l):
                if 'e' in cfg.abl and 'v_exp' in l: return False
                if 'a' in cfg.abl and 'v_add_f32' in l: return False
                if 'c' in cfg.abl and 'v_cvt_pk' in l: return False
                if 'd' in cfg.abl and 'ds_read' in l: return False
                if 'q' in cfg.abl and 'v_mfma' in l and ', a[' in l.split(',', 2)[2] and not l.strip().startswith(MF + ' a['): return False
                if 'p' in cfg.abl and 'v_mfma' in l and ', v[' in l.split('],', 2)[2][:4]: return False
                return True
            steps[u] = [l for l in steps[u] if keep(l)]
        a.l += steps[0]
        a(f"s_branch M_entry{w}")
        a.raw(".p2align 6")
        a.lab(f"M_loop{w}")
        a.l += steps[3] + steps[4]
        a.lab(f"M_entry{w}")
        a.l += steps[1] + steps[2]
        a(f"s_cbranch_scc1 M_loop{w}")
        stamp(a, cfg, 2)
        a.l += steps[63] + steps[64]
        a("s_nop 7")
        stamp(a, cfg, 3)
        vq = [qb for qb in range(4) if qb not in XS]
        xlane(a, [V_L + i for i in vq], [V_T + i for i in vq], "v_add_f32")
        for qb in XS: a(f"v_accvgpr_read_b32 v{V_L+qb}, a{A_L+qb*4}")
        if w != nv - 1: a("s_branch M_check")
    a.lab("M_check")
    a(f"v_add_f32 v{V_T+1}, v{V_L}, v{V_L+1}")
    a(f"v_add_f32 v{V_T+2}, v{V_L+2}, v{V_L+3}")
    a(f"v_add_f32 v{V_T+1}, v{V_T+1}, v{V_T+2}")
    a(f"v_mov_b32 v{V_T+3}, 0x{f32bits(2.0**26):08x}")
    a(f"v_cmp_nle_f32 vcc, v{V_T+1}, v{V_T+3}")
    if cfg.force_safe: a("s_branch M_safe")
    if not cfg.abl and not cfg.nodma: a("s_cbranch_vccnz M_safe")
    a.lab("M_fin")
    for qb in range(4): a(f"v_rcp_f32 v{V_T+qb}, v{V_L+qb}")
    a("s_nop 0")
    for qb in range(4): a(f"v_fma_f32 v{V_T+4+qb}, -v{V_L+qb}, v{V_T+qb}, 2.0")
    for qb in range(4): a(f"v_mul_f32 v{V_T+qb}, v{V_T+qb}, v{V_T+4+qb}")
    a("v_and_b32 v16, 15, v0")
    a("v_lshlrev_b32 v16, 8, v16")
    a("v_lshrrev_b32 v17, 4, v0")
    a("v_lshl_add_u32 v16, v17, 4, v16")
    a("v_add_u32 v17, 0x1000, v16")
    a("v_add_u32 v18, 0x2000, v16")
    a("v_add_u32 v19, 0x3000, v16")
    k = 0
    for qb in range(4):
        for m in range(4):
            t = 32 + (k % 8) * 4; k += 1
            o0, o1 = O(2 * m, qb), O(2 * m + 1, qb)
            for r in range(4):
                a(f"v_mul_f32 v{o0+r}, v{o0+r}, v{V_T+qb}")
                a(f"v_mul_f32 v{o1+r}, v{o1+r}, v{V_T+qb}")
                a(f"v_cvt_pk_bf16_f32 v{t+r}, v{o0+r}, v{o1+r}")
            a(f"buffer_store_dwordx4 {vr(t)}, v{16+qb}, {sr(S_OUT)}, 0 offen offset:{m*64}{cfg.o_fl}")
    if cfg.timing:
        a("s_load_dwordx2 s[64:65], s[0:1], 72")
        a("s_waitcnt vmcnt(0)")
        a("s_memtime s[60:61]")
        a("s_memrealtime s[62:63]")
        a("s_waitcnt lgkmcnt(0)")
        a("s_add_u32 s64, s64, 0x1000000")
        a("s_addc_u32 s65, s65, 0")
        srd(a, 52, "s64", "s65", 1 << 20)
        a(f"s_sub_u32 s60, s60, s{S_ST}")
        a("v_mov_b32 v4, s60")
        a(f"v_mov_b32 v5, s{S_ST+2}")
        a("v_mov_b32 v6, s62")
        a("v_mov_b32 v7, 0")
        a("s_lshl_b32 s3, s2, 2")
        a(f"s_add_u32 s3, s3, s{S_WAVE}")
        a("s_lshl_b32 s3, s3, 5")
        a("v_mov_b32 v8, s3")
        a("buffer_store_dwordx4 v[4:7], v8, s[52:55], 0 offen")
        for i in range(4):
            a(f"s_sub_u32 s{S_ST+4+2*i}, s{S_ST+4+2*i}, s{S_ST}")
            a(f"v_mov_b32 v{10+i}, s{S_ST+4+2*i}")
        a("s_nop 1")
        a("buffer_store_dwordx4 v[10:13], v8, s[52:55], 0 offen offset:16")
    a.lab("M_end")
    a("s_endpgm")
    a.lab("M_fallback")
    vmf = Track()
    a("v_and_b32 v240, 15, v0")
    a("v_lshrrev_b32 v241, 4, v0")
    a(f"s_mov_b32 s{S_CNT}, 0")
    a.lab("M_fb_loop")
    a(f"s_lshr_b32 s{T+8}, s{S_CNT}, 2")
    a(f"s_and_b32 s{T+9}, s{S_CNT}, 3")
    lane_addrs(a, T + 9, 242, 243, 244, 245, 240, 241, T + 4)
    load_k(a, cfg, vmf, 'x', 242, 243, T + 8, 128, 144, T + 12)
    load_v(a, cfg, vmf, 'x', 244, 245, T + 8, 152, 168, T + 12)
    a("s_waitcnt vmcnt(0)")
    deq_k(a, 128, 144, 176, 200)
    deq_v(a, 152, 168, 176, 208)
    store_unit(a, vmf, T + 8, T + 9, 200, 208, T + 12)
    a("s_waitcnt vmcnt(0)")
    a(f"s_add_u32 s{S_CNT}, s{S_CNT}, 1")
    a(f"s_cmp_lt_u32 s{S_CNT}, 256")
    a("s_cbranch_scc1 M_fb_loop")
    for r in range(128): a(f"v_mov_b32 v{V_O+r}, 0")
    a("s_branch M_ready")
    a.lab("M_safe")
    a(f"v_lshlrev_b32 v{V_LANE16}, 4, v0")
    VM = V_C; VA = V_C + 4
    for r in range(128): a(f"v_mov_b32 v{V_O+r}, 0")
    for r in range(4): a(f"v_mov_b32 v{V_L+r}, 0")
    for r in range(4): a(f"v_mov_b32 v{VM+r}, 0xff800000")
    a(f"s_mov_b32 s{S_CNT}, 0")
    a.lab("M_safe_loop")
    a(f"s_add_u32 s{T}, s{S_CNT}, 62")
    a(f"s_and_b32 s{T}, s{T}, 63")
    a(f"s_lshl_b32 s{T}, s{T}, 14")
    a(f"s_add_u32 s{T+1}, s{T}, 0x1000")
    a(f"s_lshl_b32 s{T+2}, s{S_CNT}, 14")
    a(f"s_add_u32 s{T+2}, s{T+2}, 0x2000")
    a(f"s_add_u32 s{T+3}, s{T+2}, 0x1000")
    for i in range(8):
        a(f"buffer_load_dwordx4 {ar(A_SAFE+i*4)}, v{V_LANE16}, {sr(S_WS)}, s{T+i//4} offen offset:{(i%4)*1024}")
    for i in range(8):
        a(f"buffer_load_dwordx4 {ar(A_SAFE+32+i*4)}, v{V_LANE16}, {sr(S_WS)}, s{T+2+i//4} offen offset:{(i%4)*1024}")
    a("s_waitcnt vmcnt(0)")
    for i in range(8):
        tb, s = i // 4, i % 4
        for qb in range(4):
            d = S(0, tb, qb)
            a(f"{MF} {vr(d)}, {ar(A_SAFE+i*4)}, {ar(Q(qb,s))}, {vr(d) if s else '0'}")
    a("s_nop 15")
    tile_max(a, 0, V_T)
    xlane(a, [V_T + i for i in range(4)], [V_T + 4 + i for i in range(4)], "v_max_f32")
    for qb in range(4): a(f"v_max_f32 v{V_T+qb}, v{V_T+qb}, v{VM+qb}")
    for qb in range(4): a(f"v_sub_f32 v{VA+qb}, v{VM+qb}, v{V_T+qb}")
    for qb in range(4): a(f"v_exp_f32 v{VA+qb}, v{VA+qb}")
    for qb in range(4): a(f"v_mov_b32 v{VM+qb}, v{V_T+qb}")
    for qb in range(4): a(f"v_mul_f32 v{V_L+qb}, v{V_L+qb}, v{VA+qb}")
    for db in range(8):
        for qb in range(4):
            for r in range(4): a(f"v_mul_f32 v{O(db,qb)+r}, v{O(db,qb)+r}, v{VA+qb}")
    for k in range(32):
        tb, qb, r = sm_elem(k); a(f"v_sub_f32 v{S(0,tb,qb)+r}, v{S(0,tb,qb)+r}, v{VM+qb}")
    for k in range(32):
        tb, qb, r = sm_elem(k); a(f"v_exp_f32 v{S(0,tb,qb)+r}, v{S(0,tb,qb)+r}")
    a("s_nop 0")
    for k in range(32):
        tb, qb, r = sm_elem(k); a(f"v_add_f32 v{V_L+qb}, v{V_L+qb}, v{S(0,tb,qb)+r}")
    for k in range(0, 32, 2):
        tb, qb, r = sm_elem(k); a(f"v_cvt_pk_bf16_f32 v{P(0,qb)+tb*2+r//2}, v{S(0,tb,qb)+r}, v{S(0,tb,qb)+r+1}")
    a("s_nop 1")
    for db in range(8):
        for qb in range(4):
            a(f"{MF} {vr(O(db,qb))}, {ar(A_SAFE+32+db*4)}, {vr(P(0,qb))}, {vr(O(db,qb))}")
    a("s_nop 15")
    a(f"s_add_u32 s{S_CNT}, s{S_CNT}, 1")
    a(f"s_cmp_lt_u32 s{S_CNT}, 64")
    a("s_cbranch_scc1 M_safe_loop")
    xlane(a, [V_L + i for i in range(4)], [V_T + i for i in range(4)], "v_add_f32")
    a("s_branch M_fin")

def kd(name, vgpr, accum, sgpr=102):
    return f""".p2align 6
.amdhsa_kernel {name}
  .amdhsa_next_free_vgpr {vgpr}
  .amdhsa_next_free_sgpr {sgpr}
  .amdhsa_accum_offset {accum}
  .amdhsa_group_segment_fixed_size 0
  .amdhsa_kernarg_size 80
  .amdhsa_user_sgpr_count 2
  .amdhsa_user_sgpr_kernarg_segment_ptr 1
  .amdhsa_system_sgpr_workgroup_id_x 1
  .amdhsa_float_denorm_mode_32 3
.end_amdhsa_kernel
"""

def generate(cfg):
    hdr = open("cdna_kernels/" + NAME + ".s.ref").read().split("; Override launch")[0]
    a = A()
    gen_main(a, cfg)
    out = hdr
    out += f"; @launch grid=(256,1,1) block=(256,1,1) lds=163840\n"
    out += '.amdgcn_target "amdgcn-amd-amdhsa--gfx950"\n.text\n'
    out += a.text()
    out += '.section .rodata,"a"\n'
    out += kd(NAME + "_kernel", 256 + NAGPR, 256)
    return out

if __name__ == "__main__":
    cfg = Cfg()
    outp = sys.argv[1]
    for kv in sys.argv[2:]:
        k, v = kv.split("=", 1)
        assert hasattr(cfg, k), k
        setattr(cfg, k, eval(v))
    open(outp, "w").write(generate(cfg))
```
